```python
import torch

def _softmax(x, axis=-1):
    return torch.softmax(x, dim=axis)
def _gelu(x):
    return torch.nn.functional.gelu(x, approximate="tanh")
def _silu(x):
    return torch.nn.functional.silu(x)
def _sigmoid(x):
    return torch.sigmoid(x)
def _layernorm(x, axis=-1, eps=1e-5):
    m = x.mean(dim=axis, keepdim=True)
    v = x.var(dim=axis, keepdim=True, unbiased=False)
    return (x - m) / torch.sqrt(v + eps)
def _scatter_add(tgt, idx, src, axis=0):
    return tgt.clone().index_add_(axis, idx, src)
def _segment_sum(src, seg, n):
    out = torch.zeros((n,) + src.shape[1:], dtype=src.dtype)
    return out.index_add_(0, seg, src)
def _pad(x, pw):
    flat = tuple(v for pair in reversed(pw) for v in pair)
    return torch.nn.functional.pad(x, flat)

kernel_name = 'standalone__gqa_block_cached__near_ridge'

def setup_inputs():

    _w = (lambda a: (lambda t: t.to(torch.bfloat16) if t.is_floating_point() else t)(torch.as_tensor(a)))
    B, Sq, D = 8, 288, 512
    Hq, Hkv, Sk, Dh = 32, 32, 1024, 128
    assert Hq % Hkv == 0, (Hq, Hkv)
    return {
        "x": _w((lambda *s: torch.randn(*s, dtype=torch.bfloat16) * 0.8)(B, Sq, D)),
        "k_cache": _w((lambda *s: torch.randn(*s, dtype=torch.bfloat16) * 0.8)(B, Hkv, Sk, Dh)),
        "v_cache": _w((lambda *s: torch.randn(*s, dtype=torch.bfloat16) * 0.05)(B, Hkv, Sk, Dh)),
        "wq": _w((lambda *s: torch.randn(*s, dtype=torch.bfloat16) * 0.8)(D, Hq * Dh) * (D ** -0.5)),
        "wo": _w((lambda *s: torch.randn(*s, dtype=torch.bfloat16) * 0.05)(Hq * Dh, D) * ((Hq * Dh) ** -0.5)),
    }

def reference(x, k_cache, v_cache, wq, wo):
    B, Sq, D = x.shape
    Hq, Dh = 32, 128
    Hkv = k_cache.shape[1]
    rep = Hq // Hkv
    q = (lambda x, *d: x.permute(*d))((x @ wq).reshape(B, Sq, Hq, Dh), 0, 2, 1, 3)
    k = (lambda x, n, axis: torch.repeat_interleave(x, n, dim=axis))(k_cache, rep, axis=1)
    v = (lambda x, n, axis: torch.repeat_interleave(x, n, dim=axis))(v_cache, rep, axis=1)
    scores = torch.einsum("bhqd,bhkd->bhqk", q, k) * (Dh ** -0.5)
    p = _softmax(scores, axis=-1)
    o = torch.einsum("bhqk,bhkd->bhqd", p, v)
    return (lambda x, *d: x.permute(*d))(o, 0, 2, 1, 3).reshape(B, Sq, Hq * Dh) @ wo
```

```python
import re

REG_RE = re.compile(r'^(v|a|s)(\d+)$|^(v|a|s)\[(\d+):(\d+)\]$')

def regs_of(tok):
    tok = tok.strip()
    if tok.startswith('-'): tok = tok[1:]
    if tok.startswith('abs(') or tok.startswith('|'):
        tok = tok.strip('|').replace('abs(', '').rstrip(')')
    if tok in ('vcc',): return {('s', 'vcc')}
    if tok in ('vcc_lo', 'vcc_hi'): return {('s', 'vcc')}
    if tok == 'm0': return {('s', 'm0')}
    if tok in ('exec', 'exec_lo', 'exec_hi'): return {('s', 'exec')}
    m = REG_RE.match(tok)
    if not m: return set()
    if m.group(1): return {(m.group(1), int(m.group(2)))}
    return {(m.group(3), r) for r in range(int(m.group(4)), int(m.group(5)) + 1)}

TRANS = ('v_exp_f32', 'v_log_f32', 'v_rcp_f32', 'v_rsq_f32', 'v_sqrt_f32', 'v_sin_f32', 'v_cos_f32')

class I:
    def __init__(self, text):
        self.text = text
        t = text.split(';')[0].strip()
        self.label = t.endswith(':')
        self.dir = t.startswith('.') or t == ''
        self.op = ''
        self.dst = set(); self.src = set(); self.srcC = set(); self.srcAB = set()
        self.kind = 'other'
        if self.label or self.dir: return
        parts = t.split(None, 1)
        self.op = op = parts[0]
        ops = []
        if len(parts) > 1:
            raw = [x.strip() for x in parts[1].split(',')]
            for k, x in enumerate(raw):
                ops.append(x.split()[0] if x else x)
            self.mods = parts[1]
        else:
            self.mods = ''
        R = [regs_of(x) for x in ops]
        U = lambda l: set().union(*l) if l else set()
        if op.startswith('v_mfma'):
            self.kind = 'mfma'; self.dst = R[0]; self.srcAB = R[1] | R[2]; self.srcC = R[3]; self.src = self.srcAB | self.srcC
            self.passes = 8 if '32x32' in op else 4
        elif op.startswith('v_cmp'):
            self.kind = 'valu'; self.dst = R[0]; self.src = U(R[1:])
            if op.startswith('v_cmpx'): self.dst |= {('s', 'exec')}
        elif op.startswith('v_permlane') and 'swap' in op:
            self.kind = 'valu'; self.dst = R[0] | R[1]; self.src = R[0] | R[1]
        elif op.startswith('v_readfirstlane') or op.startswith('v_readlane'):
            self.kind = 'valu'; self.dst = R[0]; self.src = U(R[1:])
        elif op.startswith('v_'):
            self.kind = 'valu'; self.dst = R[0]; self.src = U(R[1:])
            if op.startswith('v_fmac') or op.startswith('v_dot2c'): self.src |= R[0]
            if op.startswith('v_cndmask') and len(ops) == 3: self.src |= {('s', 'vcc')}
            if '_co_' in op: self.dst |= R[1]
        elif op.startswith('ds_read') or op.startswith('ds_bpermute') or op.startswith('ds_swizzle'):
            self.kind = 'ds'; self.dst = R[0]; self.src = U(R[1:])
        elif op.startswith('ds_'):
            self.kind = 'ds'; self.src = U(R)
        elif op.startswith('buffer_load') or op.startswith('global_load'):
            self.kind = 'vmem'
            if re.search(r'\blds\b', self.mods) or '_lds_' in op:
                self.src = U(R) | {('s', 'm0')}; self.dma = True
            else:
                self.dst = R[0]; self.src = U(R[1:])
        elif op.startswith('buffer_store') or op.startswith('global_store'):
            self.kind = 'vmem'; self.src = U(R)
            self.stdata = R[0] if op.startswith('buffer') else R[1]
        elif op.startswith('buffer_atomic') or op.startswith('global_atomic'):
            self.kind = 'vmem'; self.src = U(R)
            if re.search(r'\bsc0\b', self.mods): self.dst = R[0]
        elif op.startswith('buffer_'):
            self.kind = 'vmem'
        elif op.startswith('s_load') or op.startswith('s_memtime') or op.startswith('s_memrealtime'):
            self.kind = 'smem'; self.dst = R[0]; self.src = U(R[1:])
        elif op in ('s_waitcnt', 's_barrier', 's_nop', 's_endpgm', 's_sleep', 's_setprio') or op.startswith('s_cbranch') or op == 's_branch':
            self.kind = 'sctl'
            if op in ('s_cbranch_vccz', 's_cbranch_vccnz'): self.src = {('s', 'vcc')}
        elif op.startswith('s_cmp') or op.startswith('s_bitcmp'):
            self.kind = 'salu'; self.src = U(R)
        elif op.startswith('s_'):
            self.kind = 'salu'; self.dst = R[0]; self.src = U(R[1:])
            if 'saveexec' in op: self.dst |= {('s', 'exec')}
        else:
            raise ValueError('unknown instruction: ' + text)
    @property
    def states(self):
        if self.label or self.dir: return 0
        if self.op == 's_nop': return int(self.mods.split()[0], 0) + 1
        return 1

def need(a, b):
    n = 0
    vd = {r for r in a.dst if r[0] in 'va'}
    sd = {r for r in a.dst if r[0] == 's'}
    if a.kind == 'valu':
        if b.kind == 'mfma' and vd & b.src: n = max(n, 2)
        if b.kind == 'mfma' and ('s', 'exec') in sd: n = max(n, 4)
        if a.op.startswith(TRANS) and b.kind == 'valu' and not b.op.startswith(TRANS) and vd & b.src: n = max(n, 1)
        if b.op.startswith('v_permlane') and vd & b.src: n = max(n, 2)
        if '_dpp' in b.op and vd & b.src: n = max(n, 2)
        if (b.op.startswith('v_readfirstlane') or b.op.startswith('v_readlane')) and vd & b.src: n = max(n, 1)
        if b.kind == 'vmem' and sd & b.src: n = max(n, 5)
        if b.kind == 'valu' and sd & b.src: n = max(n, 2)
        if b.kind in ('salu', 'sctl') and sd & b.src: n = max(n, 2)
    if a.kind == 'mfma':
        p4 = a.passes == 4
        if b.kind == 'mfma':
            if a.dst & b.srcAB: n = max(n, 8 if p4 else 12)
            if a.dst & b.srcC and not (a.dst == b.srcC and a.passes == b.passes): n = max(n, 6 if p4 else 10)
            if a.dst & b.dst and not (a.dst == b.srcC) : n = max(n, 6 if p4 else 10)
        elif b.kind in ('valu', 'vmem', 'ds'):
            if a.dst & (b.src | b.dst): n = max(n, 8 if p4 else 12)
            if b.kind == 'valu' and a.srcC & b.dst: n = max(n, 3 if p4 else 7)
    if a.kind == 'salu' and ('s', 'm0') in sd and getattr(b, 'dma', False): n = max(n, 1)
    if a.kind == 'vmem' and hasattr(a, 'stdata') and len(a.stdata) >= 3 and a.stdata & b.dst: n = max(n, 2)
    if a.kind == 'ds' and a.op.startswith('ds_write') and b.kind == 'valu' and False: pass
    return n

def fix_hazards(lines, tag=''):
    out = []; ins = 0
    hist = []
    cum = 0
    for ln in lines:
        b = I(ln)
        if not (b.label or b.dir):
            req = 0
            for a, c in hist[-24:]:
                w = need(a, b)
                if w and cum - c < w: req = max(req, w - (cum - c))
            if req:
                out.append(f'    s_nop {req-1}'); ins += 1
                cum += req
            cum += b.states
            hist.append((b, cum))
        out.append(ln)
    return out, ins

def check_loop(body):
    _, n1 = fix_hazards(body)
    _, n2 = fix_hazards(body + body)
    return n1, n2

def check_waits(lines, pend_l=None, pend_v=None):
    L = list(pend_l or []); V = list(pend_v or []); smem = False
    probs = []
    for ln in lines:
        b = I(ln)
        if b.label or b.dir: continue
        if b.op == 's_waitcnt':
            m = re.search(r'lgkmcnt\((\d+)\)', b.mods)
            if m:
                n = int(m.group(1))
                if n < 15:
                    L = L[len(L) - n:] if n and len(L) > n else (L if len(L) <= n else [])
                    if n == 0: L = []
            m = re.search(r'vmcnt\((\d+)\)', b.mods)
            if m:
                n = int(m.group(1))
                V = V[len(V) - n:] if n and len(V) > n else (V if len(V) <= n else [])
                if n == 0: V = []
            continue
        touched = b.src | b.dst
        for q, nm in ((L, 'lgkm'), (V, 'vm')):
            for d, t in q:
                if d & touched: probs.append(f'{nm}: "{b.text.strip()}" touches regs pending from "{t.strip()}"')
        if b.kind in ('ds', 'smem'): L.append((b.dst, b.text))
        if b.kind == 'vmem': V.append((b.dst, b.text))
    return probs, L, V
```

```python
import struct, sys, math
from asmlib import *

NAME = 'standalone__gqa_block_cached__near_ridge'
def f2u(x): return struct.unpack('<I', struct.pack('<f', x))[0]

KSZ, SLOT, NS = 16640, 33536, 4
QB0, QSTG, QW = 33536, 28928, 20480
EXCH = 149248
MRG = 100608
LDS_A = 163840

def vr(b, n=1): return f'v{b}' if n == 1 else f'v[{b}:{b+n-1}]'
def ar(b, n=1): return f'a{b}' if n == 1 else f'a[{b}:{b+n-1}]'
ACC = lambda j, f: 16 + (j * 8 + f) * 4
OO = lambda j, dt: 16 + 32 * j + 4 * dt
SS = lambda b, kt: 176 + 8 * b + 4 * kt
PP = lambda b: 192 + 4 * b
VK = lambda u, hh: 200 + 2 * u + hh
VV = lambda u: 204 + u
VDK, VDV = 206, 207
VX = lambda j: 208 + j
VW = lambda k: 213 + k
VXR = 215
VWR = lambda hh: 216 + hh
T0 = 220
QQ = lambda j, s: 16 * j + 4 * s
KF = lambda b, f: 80 + 32 * b + 4 * f
VF = lambda b, f: 144 + 32 * b + 4 * f
WF = KF
XF = lambda b, j: 144 + 32 * b + 4 * j
LL = lambda j: 208 + 4 * j
ONES = 228
SX, SK, SV, SW, SO = 4, 8, 12, 16, 20
S_W, S_P, S_B, S_H = 24, 25, 26, 27
S_ST, S_SX, S_SW = 28, 29, 30
S_XM, S_WM = 31, 32
S_FK, S_FV, S_KOFF, S_D, S_T = 33, 34, 35, 36, 37
S_SC = 38
S_TMP = 40

def mfma(d, a, b, c): return f'    v_mfma_f32_16x16x32_bf16 {d}, {a}, {b}, {c}'

def place(mf, fixed, extras, caps):
    out = []; q = list(extras)
    for g, m in enumerate(mf):
        out.append(m)
        pre = []; post = []
        cap = caps.get(g, 0)
        while cap > 0 and q:
            x = q[0]
            k = I(x)
            if getattr(k, 'dma', False) and (pre or post): break
            if k.kind in ('ds', 'vmem') and post: break
            q.pop(0); cap -= 1
            (post if k.kind == 'valu' else pre).append(x)
        out += pre + post + fixed.get(g, [])
    out += q
    return out, len(q)

def kv_dma(kind, k, fk=S_FK, fv=S_FV, soff=S_KOFF):
    if kind == 'K':
        return [f'    s_add_u32 m0, s{fk}, {k*784}', f'    buffer_load_dwordx4 v{VDK}, s[{SK}:{SK+3}], s{soff} offen offset:{k*256} nt lds']
    return [f'    s_add_u32 m0, s{fv}, {k*800}', f'    buffer_load_dwordx4 v{VDV}, s[{SV}:{SV+3}], s{soff} offen offset:{k*256} nt lds']

def k_reads(u, buf):
    return [f'    ds_read_b128 {ar(KF(buf, kt*4+s),4)}, v{VK(u, s>>1)} offset:{kt*256+(s&1)*64}' for kt in range(2) for s in range(4)]
def v_reads(u, buf):
    return [f'    ds_read_b64_tr_b16 {ar(VF(buf, dt)+2*hf,2)}, v{VV(u)} offset:{hf*512+dt*32}' for dt in range(8) for hf in range(2)]

CAPS = {1: 2, 3: 1, 5: 2, 7: 1, 9: 2, 11: 1, 13: 2, 15: 1, 16: 2}

def slot(n, qk, sm, pv, extras, tail=()):
    Q = []; V = []
    if qk:
        i, j = qk
        for kt in range(2):
            for s in range(4):
                d = vr(SS(n & 1, kt), 4)
                Q.append(mfma(d, ar(KF(i & 1, kt*4+s), 4), ar(QQ(j, s), 4), '0' if s == 0 else d))
    if pv:
        i, j, first = pv
        p = vr(PP(n & 1), 4)
        for dt in range(8):
            d = vr(OO(j, dt), 4)
            V.append(mfma(d, ar(VF(i & 1, dt), 4), p, '0' if first else d))
        d = ar(LL(j), 4)
        V.append(mfma(d, ar(ONES, 4), p, '0' if first else d))
    if Q and V: mf = [x for k in range(8) for x in (Q[k], V[k])] + [V[8]]
    else: mf = Q or V
    smops = []
    if sm:
        b = (n - 1) & 1
        for h in range(4):
            r = SS(b, 0) + 2 * h
            smops.append((f'    v_exp_f32 v{r}, v{r}', f'    v_exp_f32 v{r+1}, v{r+1}', f'    v_cvt_pk_bf16_f32 v{PP(b)+h}, v{r}, v{r+1}'))
    fixed = {}
    if len(mf) == 17:
        for h, (e0, e1, c) in enumerate(smops):
            fixed[4*h] = [e0]; fixed[4*h+2] = [e1]; fixed[4*h+3] = [c]
        caps = CAPS
    else:
        for h, (e0, e1, c) in enumerate(smops):
            fixed[2*h] = [e0]; fixed[2*h+1] = [e1, c]
        caps = {g: 2 for g in range(len(mf))}
    out, left = place(mf, fixed, extras, caps)
    return out + list(tail), left

def gen_A():
    L = []; e = L.append
    e(f'{NAME}_a_kernel:')
    e('    s_cmp_ge_u32 s2, 256'); e('    s_cbranch_scc1 LA_end')
    e('    s_load_dwordx4 s[44:47], s[0:1], 0');
    e('    s_load_dwordx4 s[48:51], s[0:1], 16');
    e('    s_load_dwordx2 s[52:53], s[0:1], 56');
    e('    s_getpc_b64 s[54:55]')
    e('    v_lshlrev_b32 v1, 7, v0')
    e('    global_load_dword v255, v1, s[54:55]')
    e('    v_lshrrev_b32 v1, 6, v0'); e('    v_and_b32 v0, 63, v0')
    e(f'    v_readfirstlane_b32 s{S_W}, v1')
    e('    s_and_b32 s40, s2, 7'); e('    s_lshr_b32 s41, s2, 3')
    e('    s_and_b32 s42, s40, 1'); e('    s_lshl_b32 s42, s42, 2'); e('    s_and_b32 s43, s41, 3')
    e(f'    s_add_u32 s{S_B}, s42, s43')
    e('    s_lshr_b32 s42, s40, 1'); e('    s_lshl_b32 s42, s42, 3'); e('    s_lshr_b32 s40, s41, 2')
    e(f'    s_add_u32 s{S_H}, s42, s40')
    e('    s_add_u32 s40, s40, s43'); e('    s_lshl_b32 s40, s40, 2'); e(f'    s_and_b32 s{S_ST}, s40, 15')
    e(f'    s_and_b32 s{S_P}, s{S_W}, 1')
    e('    v_and_b32 v2, 15, v0'); e('    v_lshrrev_b32 v3, 4, v0'); e('    v_bfe_u32 v4, v0, 3, 1'); e('    v_bfe_u32 v5, v0, 2, 1')
    e('    v_and_b32 v6, 3, v0'); e('    v_bfe_u32 v7, v0, 2, 2')
    e('    v_lshrrev_b32 v8, 2, v0'); e('    v_lshlrev_b32 v8, 10, v8')
    e('    v_lshrrev_b32 v9, 5, v0'); e('    v_lshlrev_b32 v9, 1, v9'); e('    v_xor_b32 v9, v9, v6'); e('    v_lshl_add_u32 v8, v9, 4, v8')
    e(f'    s_lshl_b32 s40, s{S_W}, 16')
    for j in range(4):
        e(f'    s_add_u32 s41, s40, {j*16384}'); e(f'    v_add_u32 v{VX(j)}, s41, v8')
    e(f'    s_lshr_b32 s42, s{S_W}, 1'); e('    s_lshl_b32 s41, s42, 14'); e(f'    s_add_u32 s41, s41, {16*16384}'); e(f'    v_add_u32 v{VX(4)}, s41, v8')
    e('    v_bfe_u32 v8, v0, 4, 1'); e('    v_lshlrev_b32 v8, 2, v8'); e('    v_lshrrev_b32 v9, 5, v0'); e('    v_lshl_add_u32 v8, v9, 4, v8')
    e(f'    s_lshl_b32 s41, s{S_P}, 1'); e('    s_lshl_b32 s43, s42, 3'); e('    s_add_u32 s41, s41, s43')
    e('    v_add_u32 v8, s41, v8'); e('    v_lshlrev_b32 v8, 13, v8'); e(f'    v_lshl_add_u32 v{VW(0)}, v2, 4, v8')
    e(f'    v_add_u32 v{VW(1)}, 0x2000, v{VW(0)}')
    e('    v_lshlrev_b32 v8, 4, v2'); e('    v_lshl_add_u32 v9, v3, 12, v8'); e(f'    s_lshl_b32 s41, s{S_W}, 10'); e(f'    v_add_u32 v{VDK}, s41, v9')
    e('    v_lshl_add_u32 v9, v3, 11, v8'); e('    s_lshl_b32 s41, s42, 13'); e(f'    s_lshl_b32 s43, s{S_P}, 10'); e('    s_add_u32 s41, s41, s43'); e(f'    v_add_u32 v{VDV}, s41, v9')
    e(f'    s_mul_i32 s{S_XM}, s{S_W}, 5120'); e(f'    s_mul_i32 s{S_WM}, s{S_W}, 2112')
    e(f'    s_mul_i32 s{S_FK}, s{S_W}, 4160'); e(f'    s_mul_i32 s{S_FV}, s{S_W}, 4224'); e(f'    s_add_u32 s{S_FV}, s{S_FV}, {KSZ}')
    e('    s_waitcnt lgkmcnt(0)')
    e(f'    s_mul_i32 s40, s{S_B}, 294912'); e(f'    s_add_u32 s{SX}, s44, s40'); e(f'    s_addc_u32 s{SX+1}, s45, 0')
    e(f'    s_mov_b32 s{SX+2}, 294912'); e(f'    s_mov_b32 s{SX+3}, 0x20000')
    e(f'    s_lshl_b32 s40, s{S_H}, 8'); e(f'    s_add_u32 s{SW}, s50, s40'); e(f'    s_addc_u32 s{SW+1}, s51, 0')
    e(f'    s_sub_u32 s{SW+2}, 0x400000, s40'); e(f'    s_mov_b32 s{SW+3}, 0x20000')
    e(f'    s_lshl_b32 s40, s{S_B}, 5'); e(f'    s_add_u32 s40, s40, s{S_H}'); e('    s_lshl_b32 s40, s40, 18')
    e(f'    s_add_u32 s{SK}, s46, s40'); e(f'    s_addc_u32 s{SK+1}, s47, 0'); e(f'    s_mov_b32 s{SK+2}, 0x40000'); e(f'    s_mov_b32 s{SK+3}, 0x20000')
    e(f'    s_add_u32 s{SV}, s48, s40'); e(f'    s_addc_u32 s{SV+1}, s49, 0'); e(f'    s_mov_b32 s{SV+2}, 0x40000'); e(f'    s_mov_b32 s{SV+3}, 0x20000')

    def q_dma(s):
        buf = QB0 + (s & 3) * QSTG
        o = [f'    s_lshl_b32 s{S_SX}, s{S_ST}, 6', f'    s_lshl_b32 s{S_SW}, s{S_ST}, 18']
        for k in range(2):
            o += [f'    s_add_u32 m0, s{S_WM}, {buf+QW+k*1056}', f'    buffer_load_dwordx4 v{VW(k)}, s[{SW}:{SW+3}], s{S_SW} offen lds']
        for j in range(5):
            o += [f'    s_add_u32 m0, s{S_XM}, {buf+j*1024}', f'    buffer_load_dwordx4 v{VX(j)}, s[{SX}:{SX+3}], s{S_SX} offen lds']
        o += [f'    s_add_u32 s{S_ST}, s{S_ST}, 1', f'    s_and_b32 s{S_ST}, s{S_ST}, 15']
        return o
    def kv_all(step):
        o = [f'    s_mov_b32 s{S_KOFF}, {step*16384}', f'    s_add_u32 s{S_TMP}, s{S_FK}, {step*SLOT}', f'    s_add_u32 s{S_TMP+1}, s{S_FV}, {step*SLOT}']
        for k in range(4): o += kv_dma('K', k, S_TMP, S_TMP+1)
        for k in range(4): o += kv_dma('V', k, S_TMP, S_TMP+1)
        return o
    for s in range(4): L += q_dma(s)
    L += kv_all(0)
    e(f'    s_mul_i32 s40, s{S_B}, {18*131072}'); e(f'    s_lshl_b32 s41, s{S_H}, 12'); e('    s_add_u32 s40, s40, s41')
    e(f'    s_add_u32 s{SO}, s52, s40'); e(f'    s_addc_u32 s{SO+1}, s53, 0'); e(f'    s_mov_b32 s{SO+2}, {18*131072}'); e(f'    s_mov_b32 s{SO+3}, 0x20000')
    c = f2u(math.log2(math.e) / math.sqrt(128.0))
    e(f'    s_mov_b32 s{S_SC}, {c:#x}'); e(f'    s_mov_b32 s{S_SC+1}, {c:#x}')
    e('    v_lshlrev_b32 v8, 1, v4'); e('    v_xor_b32 v8, v8, v3'); e('    v_lshlrev_b32 v8, 4, v8'); e('    v_lshl_add_u32 v8, v2, 6, v8')
    e(f'    s_add_u32 s40, s{S_XM}, {QB0}'); e(f'    v_add_u32 v{VXR}, s40, v8')
    e('    v_and_b32 v8, 1, v3'); e('    v_lshl_add_u32 v8, v8, 2, v7'); e('    v_mul_u32_u24 v8, 1056, v8')
    e('    v_lshrrev_b32 v9, 1, v3'); e('    v_lshl_add_u32 v8, v9, 9, v8'); e('    v_lshl_add_u32 v8, v6, 3, v8')
    e(f'    s_lshl_b32 s40, s{S_P}, 7'); e(f'    s_add_u32 s41, s40, {QB0+QW}'); e(f'    v_add_u32 v{VWR(0)}, s41, v8')
    e(f'    s_sub_u32 s41, {QB0+QW+128}, s40'); e(f'    v_add_u32 v{VWR(1)}, s41, v8')
    e('    v_xor_b32 v8, v4, v5'); e('    v_lshl_add_u32 v8, v6, 1, v8'); e('    v_lshl_add_u32 v8, v4, 3, v8'); e('    v_mul_u32_u24 v8, 1040, v8')
    e('    v_and_b32 v10, 1, v3'); e('    v_lshl_add_u32 v10, v10, 1, v9'); e('    v_lshl_add_u32 v8, v10, 4, v8')
    e(f'    s_mul_i32 s40, s{S_P}, 640'); e(f'    v_add_u32 v{VK(0,0)}, s40, v8')
    e(f'    s_mul_i32 s40, s{S_P}, 384'); e('    s_add_u32 s40, s40, 128'); e(f'    v_add_u32 v{VK(0,1)}, s40, v8')
    e(f'    s_mul_i32 s40, s{S_P}, 384'); e('    s_sub_u32 s40, 512, s40'); e(f'    v_add_u32 v{VK(1,0)}, s40, v8')
    e(f'    s_mul_i32 s40, s{S_P}, 640'); e('    s_sub_u32 s40, 640, s40'); e(f'    v_add_u32 v{VK(1,1)}, s40, v8')
    e('    v_and_b32 v10, 1, v3'); e('    v_xor_b32 v10, v10, v9'); e('    v_lshl_add_u32 v10, v7, 1, v10'); e('    v_mul_u32_u24 v10, 1056, v10')
    e('    v_lshl_add_u32 v10, v9, 8, v10'); e('    v_lshl_add_u32 v10, v6, 3, v10')
    e(f'    s_mul_i32 s40, s{S_P}, 8448'); e(f'    s_add_u32 s41, s40, {KSZ}'); e(f'    v_add_u32 v{VV(0)}, s41, v10')
    e(f'    s_sub_u32 s41, {KSZ+8448}, s40'); e(f'    v_add_u32 v{VV(1)}, s41, v10')
    e('    v_mov_b32 v8, 0x3f803f80')
    for r in range(4): e(f'    v_accvgpr_write_b32 a{ONES+r}, v8')

    def q_reads(s):
        b = s & 1
        o = [f'    ds_read_b128 {ar(XF(b, j),4)}, v{VXR} offset:{j*1024}' for j in range(5)]
        o += [f'    ds_read_b64_tr_b16 {ar(WF(b, f)+2*h2,2)}, v{VWR(f>>2)} offset:{(f&3)*32+h2*256}' for f in range(8) for h2 in range(2)]
        d = QSTG if (s & 3) != 3 else (-3 * QSTG) & 0xffffffff
        if s < 15: o += [f'    v_add_u32 v{r}, {d:#x}, v{r}' for r in (VXR, VWR(0), VWR(1))]
        return o
    vm = {0: 29, 1: 22, 2: 22, 3: 22, 14: 7, 15: 8}
    e(f'    s_waitcnt vmcnt({vm[0]})'); e('    s_barrier')
    L += q_reads(0)
    e(f'    s_waitcnt vmcnt({vm[1]}) lgkmcnt(0)'); e('    s_barrier')
    for s in range(1, 17):
        b = (s - 1) & 1
        order = [(4, f) for f in range(4)] + [(j, f) for j in range(4) for f in range(8)]
        mf = [mfma(vr(ACC(j, f), 4), ar(WF(b, f), 4), ar(XF(b, j), 4), '0' if s == 1 else vr(ACC(j, f), 4)) for j, f in order]
        rd = q_reads(s) if s <= 15 else k_reads(0, 0) + v_reads(0, 0)
        dm = q_dma(s + 3) if s + 3 <= 15 else (kv_all(s - 13) if s >= 14 else [])
        ex = []
        rd = list(rd); dm = list(dm)
        while rd or dm:
            if dm: ex.append(dm.pop(0))
            if dm and getattr(I(dm[0]), 'dma', False) == False: ex.append(dm.pop(0))
            for _ in range(2):
                if rd and I(rd[0]).kind == 'ds': ex.append(rd.pop(0))
            if not dm and rd: ex.append(rd.pop(0))
        out, left = place(mf, {}, ex, {g: 2 for g in range(36)})
        assert left == 0, (s, left)
        L += out
        if s <= 15:
            w = vm.get(s + 1, 14)
            e(f'    s_waitcnt vmcnt({w}) lgkmcnt(0)' if s < 15 else '    s_waitcnt lgkmcnt(0)'); e('    s_barrier')
    def q_pack(j, s):
        a = ACC(j, 2 * s)
        o = [f'    v_pk_mul_f32 v[{a+2*k}:{a+2*k+1}], v[{a+2*k}:{a+2*k+1}], s[{S_SC}:{S_SC+1}]' for k in range(4)]
        o += [f'    v_cvt_pk_bf16_f32 v{a+k}, v{a+2*k}, v{a+2*k+1}' for k in range(4)]
        o2 = [f'    v_permlane16_swap_b32 v{a}, v{a+2}', f'    v_permlane16_swap_b32 v{a+1}, v{a+3}']
        o3 = [f'    v_accvgpr_write_b32 a{QQ(j, s)+k}, v{a+k}' for k in range(4)]
        return o, o2, o3
    fr = [(4, 0), (4, 1)] + [(j, s) for j in range(4) for s in range(4)]
    e(f'    s_lshl_b32 s40, s{S_W}, 11'); e(f'    s_add_u32 s41, s40, {EXCH}'); e('    v_lshlrev_b32 v8, 4, v0'); e(f'    v_add_u32 v9, s41, v8')
    e('    s_xor_b32 s40, s40, 2048'); e(f'    s_add_u32 s41, s40, {EXCH}'); e(f'    v_add_u32 v10, s41, v8')
    prev = None
    for k, (j, s) in enumerate(fr):
        o, o2, o3 = q_pack(j, s)
        L += o
        if prev:
            L += prev[0]
            if prev[2][0] == 4: e(f'    ds_write_b128 v9, {vr(ACC(4, 2*prev[2][1]),4)} offset:{prev[2][1]*1024}')
            L += prev[1]
        prev = (o2, o3, (j, s))
    L += prev[0] + prev[1]
    e('    s_waitcnt lgkmcnt(0)'); e('    s_barrier')
    e(f'    ds_read_b128 {ar(QQ(4,2),4)}, v10'); e(f'    ds_read_b128 {ar(QQ(4,3),4)}, v10 offset:1024')

    e(f'    s_mov_b32 s{S_KOFF}, {4*16384}'); e(f'    s_mov_b32 s{S_D}, {SLOT}'); e(f'    s_mov_b32 s{S_T}, 1')
    addr = [VK(0,0), VK(0,1), VV(0), VK(1,0), VK(1,1), VV(1)]
    def iteration(t, n0, static):
        o = []; n = n0
        units = ([(2*t-1, j) for j in range(4)] if t >= 1 else []) + ([(2*t, j) for j in range(5)] if t <= 15 else [])
        def prev_unit(u, k):
            i, j = u
            for _ in range(k):
                if j > 0: j -= 1
                else:
                    i -= 1
                    if i < 0: return None
                    j = 4 if i % 2 == 0 else 3
            return (i, j)
        dmas = [kv_dma('K', k) for k in range(4)] + [kv_dma('V', k) for k in range(4)] if 1 <= t <= 15 else []
        for (i, j) in units:
            A = (i & 1) == 1
            ex = []; tail = []
            if t <= 15:
                u = 0 if A else 1
                kr = k_reads(u, u); vrd = v_reads(u, u)
                rd = kr[4*j:4*j+4] if j < 2 else (vrd[8*(j-2):8*(j-2)+8] if j < 4 else [])
                dm = dmas.pop(0) if (dmas and j < 4) else []
                ex = ([dm[0]] + rd[:1] + [dm[1]] + rd[1:]) if dm else rd
                if A and j == 3: tail = ['    s_waitcnt lgkmcnt(14)']
                if (not A) and j == 1: tail = ['    s_waitcnt lgkmcnt(8)']
                if t == 0 and j == 3: tail = ['    s_waitcnt lgkmcnt(14)']
                if (not A) and j == 4:
                    if t >= 1:
                        ex += [f'    s_add_u32 s{S_FK}, s{S_FK}, s{S_D}', f'    s_add_u32 s{S_FV}, s{S_FV}, s{S_D}', f'    s_add_u32 s{S_KOFF}, s{S_KOFF}, 16384',
                               f'    s_and_b32 s{S_TMP}, s{S_T}, 3', f'    s_cmp_eq_u32 s{S_TMP}, 3', f'    s_cselect_b32 s{S_D}, {(-3*SLOT) & 0xffffffff:#x}, s{S_TMP+2}',
                               f'    s_add_u32 s{S_T}, s{S_T}, 1']
                    ex += [f'    v_add_u32 v{r}, s{S_D}, v{r}' for r in addr]
                    tail = ['    s_waitcnt vmcnt(16) lgkmcnt(0)', '    s_barrier']
            pu = prev_unit((i, j), 2); su = prev_unit((i, j), 1)
            pv = (pu[0], pu[1], pu[0] == 0) if pu else None
            out, left = slot(n, (i, j), su is not None, pv, ex, tail)
            o += out; n += 1
        if t == 16:
            out, _ = slot(n, None, True, (31, 2, False), []); o += out; n += 1
            out, _ = slot(n, None, False, (31, 3, False), []); o += out; n += 1
        return o, n
    e(f'    s_mov_b32 s{S_TMP+2}, {SLOT}')
    o, n = iteration(0, 0, True); L += o
    o, n = iteration(1, n, True); L += o
    e('LA_loop:')
    o1, n1 = iteration(2, n, False); o2, n2 = iteration(3, n1, False)
    body = o1 + o2[:-1] + [f'    s_cmp_lt_u32 s{S_T}, 16', o2[-1], '    s_cbranch_scc1 LA_loop']
    print('loop hazards', check_loop(body), 'instrs', len(body), file=sys.stderr)
    L += body
    o, n = iteration(16, n, True); L += o

    e(f'    s_mul_i32 s40, s{S_W}, 8448'); e(f'    s_add_u32 s40, s40, {MRG}'); e('    v_lshlrev_b32 v8, 4, v0'); e('    v_add_u32 v9, s40, v8')
    for dt in range(8): e(f'    ds_write_b128 v9, {vr(OO(4, dt),4)} offset:{dt*1024}')
    e('    v_lshlrev_b32 v10, 2, v0'); e('    v_add_u32 v10, s40, v10')
    e(f'    ds_write_b32 v10, a{LL(4)} offset:8192')
    e(f'    s_lshl_b32 s41, s{S_P}, 12'); e('    s_add_u32 s42, s40, s41'); e('    v_add_u32 v11, s42, v8')
    e(f'    s_xor_b32 s43, s{S_W}, 1'); e('    s_mul_i32 s43, s43, 8448'); e(f'    s_add_u32 s43, s43, {MRG}')
    e('    s_add_u32 s42, s43, s41'); e('    v_add_u32 v12, s42, v8')
    e('    v_lshlrev_b32 v10, 2, v0'); e('    v_add_u32 v10, s43, v10')
    def norm_store(base, nk, rl, voff, soff, koff):
        o = []
        for kk in range(nk):
            a = base + 8 * kk
            o += [f'    v_pk_mul_f32 v[{a+2*k}:{a+2*k+1}], v[{a+2*k}:{a+2*k+1}], v[{rl}:{rl+1}] op_sel_hi:[1,0]' for k in range(4)]
            o += [f'    v_cvt_pk_bf16_f32 v{a+k}, v{a+2*k}, v{a+2*k+1}' for k in range(4)]
            o += [f'    buffer_store_dwordx4 {vr(a,4)}, v{voff}, s[{SO}:{SO+3}], s{soff} offen offset:{(koff+kk)*1024}']
        return o
    for j in range(4): e(f'    v_accvgpr_read_b32 v{T0+2*j}, a{LL(j)}')
    e(f'    v_accvgpr_read_b32 v{T0+8}, a{LL(4)}')
    for j in range(4): e(f'    v_rcp_f32 v{T0+2*j}, v{T0+2*j}')
    e('    s_waitcnt lgkmcnt(0)'); e('    s_barrier')
    for k in range(4): e(f'    ds_read_b128 {vr(OO(4, k),4)}, v11 offset:{k*1024}')
    for k in range(4): e(f'    ds_read_b128 {vr(OO(4, 4+k),4)}, v12 offset:{k*1024}')
    e(f'    ds_read_b32 v{T0+9}, v10 offset:8192')
    for j in range(4):
        e(f'    s_lshl_b32 s40, s{S_W}, 19'); e(f'    s_add_u32 s40, s40, {j*131072}')
        L += norm_store(OO(j, 0), 4, T0+2*j, 8, 40, 0)
    e('    s_waitcnt lgkmcnt(0)')
    e(f'    v_add_f32 v{T0+8}, v{T0+8}, v{T0+9}'); e(f'    v_rcp_f32 v{T0+8}, v{T0+8}')
    for k in range(8):
        a = OO(4, 0) + 2 * k
        e(f'    v_pk_add_f32 v[{a}:{a+1}], v[{a}:{a+1}], v[{a+16}:{a+17}]')
    e(f'    s_lshr_b32 s40, s{S_W}, 1'); e('    s_add_u32 s40, s40, 16'); e('    s_lshl_b32 s40, s40, 17'); e(f'    s_lshl_b32 s41, s{S_P}, 11'); e('    s_add_u32 s40, s40, s41')
    L += norm_store(OO(4, 0), 2, T0+8, 8, 40, 0)
    e('LA_end:'); e('    s_endpgm')
    return L

def gen_B():
    L = []; e = L.append
    SOr, SWo, SOut = 4, 8, 12
    ACCB = lambda j, nt: 16 + (j * 4 + nt) * 4
    OFR = lambda b, j: 96 + (b * 5 + j) * 4
    WFR = lambda b, nt: 176 + (b * 4 + nt) * 4
    ND = 8; KB = 4224
    e(f'{NAME}_b_kernel:')
    e('    s_cmp_ge_u32 s2, 256'); e('    s_cbranch_scc1 LB_end')
    e('    s_load_dwordx4 s[44:47], s[0:1], 32');
    e('    s_load_dwordx2 s[48:49], s[0:1], 56');
    e('    v_lshrrev_b32 v1, 6, v0'); e('    v_and_b32 v0, 63, v0')
    e('    v_readfirstlane_b32 s24, v1')
    e('    s_and_b32 s26, s2, 7'); e('    s_lshr_b32 s40, s2, 3'); e('    s_and_b32 s27, s40, 3'); e('    s_lshr_b32 s28, s40, 2')
    e('    s_lshl_b32 s29, s27, 2'); e('    s_min_u32 s40, s27, 1'); e('    s_add_u32 s29, s29, s40')
    e('    v_and_b32 v2, 15, v0'); e('    v_lshrrev_b32 v3, 4, v0'); e('    v_and_b32 v6, 3, v0'); e('    v_bfe_u32 v7, v0, 2, 2')
    e('    v_lshlrev_b32 v8, 4, v0'); e('    s_lshl_b32 s40, s24, 15'); e('    v_add_u32 v210, s40, v8')
    for j in range(5): e(f'    s_add_u32 s40, s29, {j}'); e(f'    s_lshl_b32 s{30+j}, s40, 17')
    e('    v_bfe_u32 v9, v0, 3, 1'); e('    v_lshlrev_b32 v9, 2, v9'); e('    v_lshl_add_u32 v9, v3, 3, v9'); e('    v_lshlrev_b32 v9, 10, v9')
    e('    v_and_b32 v10, 7, v0'); e('    v_lshl_add_u32 v9, v10, 4, v9')
    e('    s_lshl_b32 s40, s24, 20'); e('    s_lshl_b32 s41, s28, 7'); e('    s_add_u32 s40, s40, s41'); e('    v_add_u32 v211, s40, v9')
    e('    v_mul_u32_u24 v9, 1056, v7'); e('    v_lshl_add_u32 v9, v3, 7, v9'); e('    v_lshl_add_u32 v9, v6, 3, v9')
    e(f'    s_mul_i32 s35, s24, {ND*KB}'); e('    v_add_u32 v212, s35, v9')
    e('    s_waitcnt lgkmcnt(0)')
    e(f'    s_mul_i32 s40, s26, {18*131072}'); e(f'    s_add_u32 s{SOr}, s48, s40'); e(f'    s_addc_u32 s{SOr+1}, s49, 0'); e(f'    s_mov_b32 s{SOr+2}, {18*131072}'); e(f'    s_mov_b32 s{SOr+3}, 0x20000')
    e(f'    s_mov_b32 s{SWo}, s44'); e(f'    s_mov_b32 s{SWo+1}, s45'); e(f'    s_mov_b32 s{SWo+2}, 0x400000'); e(f'    s_mov_b32 s{SWo+3}, 0x20000')
    e(f'    s_mul_i32 s40, s26, 294912'); e(f'    s_add_u32 s{SOut}, s46, s40'); e(f'    s_addc_u32 s{SOut+1}, s47, 0'); e(f'    s_mov_b32 s{SOut+2}, 294912'); e(f'    s_mov_b32 s{SOut+3}, 0x20000')
    def w_dma(ks):
        o = [f'    s_mov_b32 s36, {ks*32768}']
        for p in range(4):
            o += [f'    s_add_u32 m0, s35, {(ks % ND)*KB + p*32}', f'    buffer_load_dwordx4 v211, s[{SWo}:{SWo+3}], s36 offen offset:{p*1024} lds']
        return o
    def o_ld(ks):
        o = []
        if ks % 4 == 0 and ks > 0: o.append('    v_add_u32 v210, 0x1000, v210')
        o += [f'    buffer_load_dwordx4 {vr(OFR(ks & 3, j),4)}, v210, s[{SOr}:{SOr+3}], s{30+j} offen offset:{(ks & 3)*1024}' for j in range(5)]
        return o
    def w_rd(ks):
        return [f'    ds_read_b64_tr_b16 {vr(WFR(ks & 1, nt)+2*h,2)}, v212 offset:{(ks % ND)*KB + nt*32 + h*512}' for nt in range(4) for h in range(2)]
    vq = []
    def iss(lines, tag):
        for x in lines:
            L.append(x)
            if I(x).kind == 'vmem': vq.append(tag)
    def wait_for(tags, extra=''):
        last = max(i for i, t in enumerate(vq) if t in tags)
        n = len(vq) - 1 - last
        e(f'    s_waitcnt vmcnt({min(n,63)}){extra}')
    for ks in range(3): iss(w_dma(ks), ('W', ks)); iss(o_ld(ks), ('O', ks))
    for ks in range(3, 6): iss(w_dma(ks), ('W', ks))
    wait_for({('W', 0)})
    L += w_rd(0)
    for ks in range(32):
        if ks + 3 < 32: iss(o_ld(ks + 3), ('O', ks + 3))
        tags = {('O', ks)} | ({('W', ks + 1)} if ks + 1 < 32 else set())
        wait_for(tags, ' lgkmcnt(0)')
        mf = [mfma(vr(ACCB(j, nt), 4), vr(WFR(ks & 1, nt), 4), vr(OFR(ks & 3, j), 4), '0' if ks == 0 else vr(ACCB(j, nt), 4)) for j in range(5) for nt in range(4)]
        ex = (w_rd(ks + 1) if ks + 1 < 32 else [])
        dm = w_dma(ks + 6) if ks + 6 < 32 else []
        out, left = place(mf, {}, ex + dm, {g: 2 for g in range(20)})
        iss(out, ('W', ks + 6))
    e('    s_barrier')
    e('    s_mul_i32 s40, s24, 20480'); e('    v_lshlrev_b32 v8, 4, v0'); e('    v_add_u32 v9, s40, v8')
    for j in range(5):
        for nt in range(4): e(f'    ds_write_b128 v9, {vr(ACCB(j, nt),4)} offset:{(nt*5+j)*1024}')
    e('    s_mul_i32 s40, s24, 5120'); e('    v_add_u32 v9, s40, v8'); e('    v_add_u32 v10, 40960, v9')
    e('    s_waitcnt lgkmcnt(0)'); e('    s_barrier')
    for w2 in range(4):
        for j in range(5): e(f'    ds_read_b128 {vr(16+(w2*5+j)*4,4)}, v{9 if w2 < 2 else 10} offset:{(w2 & 1)*20480 + j*1024}')
    e('    v_lshlrev_b32 v11, 10, v2'); e('    v_lshl_add_u32 v11, v3, 3, v11')
    e('    s_lshl_b32 s40, s29, 14'); e('    s_lshl_b32 s41, s28, 7'); e('    s_add_u32 s40, s40, s41'); e('    s_lshl_b32 s41, s24, 5'); e('    s_add_u32 s40, s40, s41')
    e('    s_waitcnt lgkmcnt(0)')
    for j in range(5):
        a = 16 + j * 4
        for k in (0, 2): e(f'    v_pk_add_f32 v[{a+k}:{a+k+1}], v[{a+k}:{a+k+1}], v[{a+20+k}:{a+21+k}]')
        for k in (0, 2): e(f'    v_pk_add_f32 v[{a+40+k}:{a+41+k}], v[{a+40+k}:{a+41+k}], v[{a+60+k}:{a+61+k}]')
        for k in (0, 2): e(f'    v_pk_add_f32 v[{a+k}:{a+k+1}], v[{a+k}:{a+k+1}], v[{a+40+k}:{a+41+k}]')
        e(f'    v_cvt_pk_bf16_f32 v{a}, v{a}, v{a+1}'); e(f'    v_cvt_pk_bf16_f32 v{a+1}, v{a+2}, v{a+3}')
        e(f'    buffer_store_dwordx2 v[{a}:{a+1}], v11, s[{SOut}:{SOut+3}], s40 offen'); e('    s_add_u32 s40, s40, 16384')
    e('LB_end:'); e('    s_endpgm')
    return L

def desc(name, nv, acc):
    return f'''.p2align 6
.amdhsa_kernel {name}
  .amdhsa_next_free_vgpr {nv}
  .amdhsa_next_free_sgpr 102
  .amdhsa_accum_offset {acc}
  .amdhsa_group_segment_fixed_size 0
  .amdhsa_kernarg_size 64
  .amdhsa_user_sgpr_count 2
  .amdhsa_user_sgpr_kernarg_segment_ptr 1
  .amdhsa_system_sgpr_workgroup_id_x 1
.end_amdhsa_kernel
'''

def main(path):
    A, na = fix_hazards(gen_A()); B, nb = fix_hazards(gen_B())
    for nm, X in (('A', A), ('B', B)):
        p, _, _ = check_waits(X)
        print(nm, 'instrs', len(X), 'wait problems', len(p), file=sys.stderr)
        for x in p[:10]: print('  ', x, file=sys.stderr)
    print('pads', na, nb, file=sys.stderr)
    s = [f'; @launch kernel={NAME}_a_kernel grid=(256,1,1) block=(256,1,1) lds={LDS_A}',
         f'; @launch kernel={NAME}_b_kernel grid=(256,1,1) block=(256,1,1) lds=135168',
         '.amdgcn_target "amdgcn-amd-amdhsa--gfx950"', '.text']
    for nm, X in ((f'{NAME}_a_kernel', A), (f'{NAME}_b_kernel', B)):
        s += [f'.globl {nm}', '.p2align 8', f'.type {nm},@function'] + X
    s += ['.section .rodata,"a"', desc(f'{NAME}_a_kernel', 512, 256), desc(f'{NAME}_b_kernel', 256, 256)]
    open(path, 'w').write('\n'.join(s) + '\n')

if __name__ == '__main__':
    main(sys.argv[1] if len(sys.argv) > 1 else 'cdna_kernels/' + NAME + '.s')
```

```python
import struct, sys, math
from asmlib import *

NAME = 'standalone__gqa_block_cached__near_ridge'
def f2u(x): return struct.unpack('<I', struct.pack('<f', x))[0]

class Opt:
    stamp = None
    ntq = ''
    ntw = ''
    kv0_it = 3
    warm = 1
    safe = True
    force_safe = False
    cyc = False
    rot2 = True
OPT = Opt()

KSZ, SLOT = 16640, 33536
QB0, QSTG, QW = 33536, 28928, 20480
EXCH = 149248
MRG = 100608
WB = 4192
WSP = 134400
FLG = 163584
LDS_SZ = 163840
XOFF = 32 << 20; F1OFF = 40 << 20; F2OFF = F1OFF + 65536; STOFF = 128 << 20

def vr(b, n=1): return f'v{b}' if n == 1 else f'v[{b}:{b+n-1}]'
def ar(b, n=1): return f'a{b}' if n == 1 else f'a[{b}:{b+n-1}]'
ACC = lambda j, f: 16 + (j * 8 + f) * 4
OO = lambda j, dt: 16 + 32 * j + 4 * dt
SS = lambda b, kt: 176 + 8 * b + 4 * kt
PP = lambda b: 192 + 4 * b
VK = lambda u, hh: 200 + 2 * u + hh
VV = lambda u: 204 + u
VDK, VDV = 206, 207
VX = lambda j: 208 + j
VW = lambda k: 213 + k
VXR = 215
VWR = lambda hh: 216 + hh
T0 = 220
VOF = lambda a: 240 + a
VWD = 244
VWO = lambda k: 245 + k
VL16 = 248
QQ = lambda j, s: 16 * j + 4 * s
KF = lambda b, f: 80 + 32 * b + 4 * f
VF = lambda b, f: 144 + 32 * b + 4 * f
WF = KF
XF = lambda b, j: 144 + 32 * b + 4 * j
LL = lambda j: 208 + 4 * j
ONES = 228
MM = lambda j: 230 + j
SX, SK, SV, SW, SO = 4, 8, 12, 16, 20
S_W, S_P, S_B, S_H = 24, 25, 26, 27
S_ST, S_SX, S_SW = 28, 29, 30
S_XM, S_WM = 31, 32
S_FK, S_FV, S_KOFF, S_D, S_T = 33, 34, 35, 36, 37
S_SC = 38
S_TMP = 40
SWS, SWO, SDB = 4, 16, 8
SWO = 92; SWS = 96
S_KH, S_NS, S_R4, S_WOM, S_B2, S_T1, S_T2 = 84, 85, 86, 87, 88, 89, 90
S_SAFE = 91
S_SLOT = 100

def mfma(d, a, b, c): return f'    v_mfma_f32_16x16x32_bf16 {d}, {a}, {b}, {c}'

class Em:
    def __init__(self):
        self.L = []; self.vq = []
    def e(self, *xs):
        for x in xs: self.put(x)
    def put(self, x, tag=None):
        if not x.startswith(' ') and not x.endswith(':'): x = '    ' + x
        t = None
        if '#@' in x:
            x, t = x.split('#@'); x = x.rstrip()
        self.L.append(x)
        if not x.endswith(':') and I(x).kind == 'vmem': self.vq.append(t)
    def ext(self, xs):
        for x in xs: self.put(x)
    def vm_n(self, tags):
        idx = [i for i, t in enumerate(self.vq) if t in tags]
        assert idx, tags
        return len(self.vq) - 1 - max(idx)
    def wait(self, tags=None, lgkm=None):
        s = []
        if tags is not None:
            if any(t in tags for t in self.vq):
                n = self.vm_n(tags)
                assert n <= 63
                s.append(f'vmcnt({n})')
                self.vq = self.vq[len(self.vq) - n:] if n else []
        if lgkm is not None: s.append(f'lgkmcnt({lgkm})')
        if s: self.put('s_waitcnt ' + ' '.join(s))
    def stamp(self, k, kind='main', drain=True):
        if OPT.stamp and (kind == OPT.stamp or k == 0):
            self.put(f'{"s_memtime" if OPT.cyc else "s_memrealtime"} s[{60+2*k}:{61+2*k}]')
            if drain: self.put('s_waitcnt lgkmcnt(0)')

def place(mf, fixed, extras, caps, dma_gaps=None):
    out = []; q = list(extras)
    for g, m in enumerate(mf):
        out.append(m)
        pre = []; post = []
        cap = caps.get(g, 0)
        while cap > 0 and q:
            k = I(q[0].split('#@')[0])
            if k.kind == 'vmem' and (pre or post): break
            if k.kind == 'vmem' and dma_gaps is not None and g not in dma_gaps: break
            if k.kind in ('ds', 'vmem') and post: break
            x = q.pop(0); cap -= 1
            (post if k.kind == 'valu' else pre).append(x)
        out += pre + post + fixed.get(g, [])
    return out + q, len(q)

def weave(mf, streams):
    per = {g: [] for g in range(len(mf))}
    for lines, gaps in streams:
        assert len(gaps) >= len(lines), (len(lines), len(gaps))
        for x, g in zip(lines, gaps): per[g].append(x)
    out = []
    rank = {'vmem': 0, 'ds': 1, 'salu': 2, 'sctl': 2, 'valu': 3}
    for g, m in enumerate(mf):
        out.append(m)
        out += sorted(per[g], key=lambda x: rank[I(x.split('#@')[0]).kind])
    return out

def kv_dma(kind, k, tag, fk=S_FK, fv=S_FV, soff=S_KOFF):
    if kind == 'K':
        return [f'    s_add_u32 m0, s{fk}, {k*784}', f'    buffer_load_dwordx4 v{VDK}, s[{SK}:{SK+3}], s{soff} offen offset:{k*256} nt lds #@{tag}']
    return [f'    s_add_u32 m0, s{fv}, {k*800}', f'    buffer_load_dwordx4 v{VDV}, s[{SV}:{SV+3}], s{soff} offen offset:{k*256} nt lds #@{tag}']
def k_reads(u, buf):
    return [f'    ds_read_b128 {ar(KF(buf, kt*4+s),4)}, v{VK(u, s>>1)} offset:{kt*256+(s&1)*64}' for kt in range(2) for s in range(4)]
def v_reads(u, buf):
    return [f'    ds_read_b64_tr_b16 {ar(VF(buf, dt)+2*hf,2)}, v{VV(u)} offset:{hf*512+dt*32}' for dt in range(8) for hf in range(2)]

def wbuf(i):
    i = i if i < 7 else (i - 7 if i < 14 else i - 14 + 100)
    if i >= 100: return 3 * SLOT + (i - 100) * 4 * WB
    return (i >> 1) * SLOT + (i & 1) * 4 * WB if i < 6 else WSP
def wo_dma(i):
    g = []
    for p in range(4):
        pre = []
        if p == 0:
            pre = [f'    s_add_u32 s{S_TMP+1}, s{S_R4}, {i >> 2}', f'    s_and_b32 s{S_TMP+1}, s{S_TMP+1}, 3', f'    s_lshl_b32 s{S_TMP+1}, s{S_TMP+1}, 17',
                   f'    s_add_u32 s{S_TMP+3}, s{S_TMP+1}, {(i & 3) << 15}']
        g.append(pre + [f'    s_add_u32 m0, s{S_WOM}, {wbuf(i) + p*32}', f'    buffer_load_dwordx4 v{VWD}, s[{SWO}:{SWO+3}], s{S_TMP+3} offen offset:{p*1024} {OPT.ntw}lds #@W{i}'])
    return g
def wo_reads(i):
    a = wbuf(i); win = 0 if a < 2 * SLOT else (1 if a < WSP else 2); off = a - (0, 2 * SLOT, WSP)[win]
    return [f'    ds_read_b64_tr_b16 {ar(16*i+4*nt+2*h,2)}, v{VWO(win)} offset:{off + nt*32 + h*512}' for nt in range(4) for h in range(2)]

CAPS = {1: 2, 3: 1, 5: 2, 7: 1, 9: 2, 11: 1, 13: 2, 15: 1, 16: 2}

def slot(n, qk, sm, pv, extras, tail=()):
    Q = []; V = []
    if qk:
        i, j = qk
        for kt in range(2):
            for s in range(4):
                d = vr(SS(n & 1, kt), 4)
                Q.append(mfma(d, ar(KF(i & 1, kt*4+s), 4), ar(QQ(j, s), 4), '0' if s == 0 else d))
    if pv:
        i, j, first = pv
        p = vr(PP(n & 1), 4)
        for dt in range(8):
            d = vr(OO(j, dt), 4)
            V.append(mfma(d, ar(VF(i & 1, dt), 4), p, '0' if first else d))
        d = ar(LL(j), 4)
        V.append(mfma(d, ar(ONES, 4), p, '0' if first else d))
    if Q and V: mf = [x for k in range(8) for x in (Q[k], V[k])] + [V[8]]
    else: mf = Q or V
    smops = []
    if sm:
        b = (n - 1) & 1
        for h in range(4):
            r = SS(b, 0) + 2 * h
            smops.append((f'    v_exp_f32 v{r}, v{r}', f'    v_exp_f32 v{r+1}, v{r+1}', f'    v_cvt_pk_bf16_f32 v{PP(b)+h}, v{r}, v{r+1}'))
    fixed = {}
    if len(mf) == 17:
        for h, (e0, e1, c) in enumerate(smops):
            fixed[4*h] = [e0]; fixed[4*h+2] = [e1]; fixed[4*h+3] = [c]
        caps = CAPS
    else:
        prevc = None
        for h, (e0, e1, c) in enumerate(smops):
            fixed[2*h] = [e0] + ([prevc] if prevc else []); fixed[2*h+1] = [e1]; prevc = c
        if prevc: tail = [prevc] + list(tail)
        caps = {g: 2 for g in range(len(mf))}
    out, left = place(mf, fixed, extras, caps)
    return out + list(tail)

def srd(E, d, ptr, off_sreg, size):
    if off_sreg is None: E.e(f's_mov_b32 s{d}, s{ptr}', f's_mov_b32 s{d+1}, s{ptr+1}')
    else: E.e(f's_add_u32 s{d}, s{ptr}, s{off_sreg}', f's_addc_u32 s{d+1}, s{ptr+1}, 0')
    E.e(f's_mov_b32 s{d+2}, {size}', f's_mov_b32 s{d+3}, 0x20000')

def gen():
    E = Em(); e = E.e
    e(f'{NAME}_kernel:')
    e('s_cmp_ge_u32 s2, 256', 's_cbranch_scc1 L_end')
    E.stamp(0, drain=False)
    e('s_load_dwordx16 s[44:59], s[0:1], 0')
    e('s_getpc_b64 s[42:43]', 'L_pc:', 'v_lshlrev_b32 v1, 7, v0')
    e('global_load_dword v255, v1, s[42:43]    ; pull this kernel\'s code into L2 #@code')
    e('v_add_u32 v1, 0x8000, v1', 'v_min_u32 v1, L_end-L_pc, v1', 'global_load_dword v254, v1, s[42:43] #@code')
    e('v_lshrrev_b32 v1, 6, v0', 'v_and_b32 v0, 63, v0', f'v_readfirstlane_b32 s{S_W}, v1')
    e('s_and_b32 s40, s2, 7', 's_lshr_b32 s41, s2, 3', 's_and_b32 s42, s40, 1', 's_lshl_b32 s42, s42, 2', 's_and_b32 s43, s41, 3', f's_add_u32 s{S_B}, s42, s43')
    e('s_lshr_b32 s42, s40, 1', 's_lshl_b32 s42, s42, 3', 's_lshr_b32 s40, s41, 2', f's_add_u32 s{S_H}, s42, s40')
    if OPT.rot2: e('s_lshl_b32 s43, s43, 1', 's_add_u32 s40, s40, s43', 's_lshl_b32 s40, s40, 1', f's_and_b32 s{S_ST}, s40, 15', f's_and_b32 s{S_P}, s{S_W}, 1')
    else: e('s_add_u32 s40, s40, s43', 's_lshl_b32 s40, s40, 2', f's_and_b32 s{S_ST}, s40, 15', f's_and_b32 s{S_P}, s{S_W}, 1')
    e('v_and_b32 v2, 15, v0', 'v_lshrrev_b32 v3, 4, v0', 'v_and_b32 v6, 3, v0')
    e('v_lshrrev_b32 v8, 2, v0', 'v_lshlrev_b32 v8, 10, v8', 'v_lshrrev_b32 v9, 5, v0', 'v_lshlrev_b32 v9, 1, v9', 'v_xor_b32 v9, v9, v6', 'v_lshl_add_u32 v8, v9, 4, v8')
    e(f's_lshl_b32 s40, s{S_W}, 16')
    for j in range(4): e(f's_add_u32 s41, s40, {j*16384}', f'v_add_u32 v{VX(j)}, s41, v8')
    e(f's_lshr_b32 s42, s{S_W}, 1', 's_lshl_b32 s41, s42, 14', f's_add_u32 s41, s41, {16*16384}', f'v_add_u32 v{VX(4)}, s41, v8')
    e('v_bfe_u32 v8, v0, 4, 1', 'v_lshlrev_b32 v8, 2, v8', 'v_lshrrev_b32 v9, 5, v0', 'v_lshl_add_u32 v8, v9, 4, v8')
    e(f's_lshl_b32 s41, s{S_P}, 1', 's_lshl_b32 s43, s42, 3', 's_add_u32 s41, s41, s43')
    e('v_add_u32 v8, s41, v8', 'v_lshlrev_b32 v8, 13, v8', f'v_lshl_add_u32 v{VW(0)}, v2, 4, v8', f'v_add_u32 v{VW(1)}, 0x2000, v{VW(0)}')
    e(f's_mul_i32 s{S_XM}, s{S_W}, 5120', f's_mul_i32 s{S_WM}, s{S_W}, 2112')
    e('s_waitcnt lgkmcnt(0)')
    e(f's_mul_i32 s40, s{S_B}, 294912'); srd(E, SX, 44, 40, 294912)
    e(f's_lshl_b32 s40, s{S_H}, 8'); srd(E, SW, 50, 40, 0x400000 - 8192 + 256)

    def q_dma(s):
        buf = QB0 + (s & 3) * QSTG
        g = []
        for k in range(2):
            pre = [f'    s_lshl_b32 s{S_SW}, s{S_ST}, 18'] if k == 0 else [f'    s_lshl_b32 s{S_SX}, s{S_ST}, 6']
            g.append(pre + [f'    s_add_u32 m0, s{S_WM}, {buf+QW+k*1056}', f'    buffer_load_dwordx4 v{VW(k)}, s[{SW}:{SW+3}], s{S_SW} offen {OPT.ntq}lds #@S{s}'])
        for j in range(5):
            pre = [[f'    s_add_u32 s{S_ST}, s{S_ST}, 1'], [f'    s_and_b32 s{S_ST}, s{S_ST}, 15'], [], [], []][j]
            g.append(pre + [f'    s_add_u32 m0, s{S_XM}, {buf+j*1024}', f'    buffer_load_dwordx4 v{VX(j)}, s[{SX}:{SX+3}], s{S_SX} offen {OPT.ntq}lds #@S{s}'])
        return g
    def kv_all(step):
        g = [kv_dma('K', k, f'KV{step}', S_TMP, S_TMP+2) for k in range(4)] + [kv_dma('V', k, f'KV{step}', S_TMP, S_TMP+2) for k in range(4)]
        g[0] = [f'    s_mov_b32 s{S_KOFF}, {step*16384}', f'    s_add_u32 s{S_TMP}, s{S_FK}, {step*SLOT}', f'    s_add_u32 s{S_TMP+2}, s{S_FV}, {step*SLOT}'] + g[0]
        return g
    flat = lambda g: [x for y in g for x in y]
    E.ext(flat(q_dma(0)))
    srd(E, SWS, 58, None, 64 << 20)
    e(f's_lshl_b32 s40, s{S_B}, 5', f's_add_u32 s40, s40, s{S_H}', 's_lshl_b32 s41, s40, 7', f's_add_u32 s41, s41, {F1OFF}')
    e('s_lshl_b32 s42, s2, 9', f's_add_u32 s42, s42, {F2OFF - 128}', 'v_lshlrev_b32 v8, 7, v0', 'v_add_u32 v8, s42, v8', 'v_mov_b32 v9, s41')
    e('v_cmp_eq_u32 vcc, 0, v0', 'v_cndmask_b32 v8, v8, v9, vcc')
    e(f's_lshl_b32 s42, s{S_W}, 6', 'v_add_u32 v9, s42, v0', 'v_cmp_gt_u32 vcc, 5, v9', 'v_mov_b32 v9, 0x7ffffff0', 'v_cndmask_b32 v8, v9, v8, vcc', 'v_mov_b32 v9, 0')
    e(f'buffer_store_dword v9, v8, s[{SWS}:{SWS+3}], 0 offen sc1 #@clr')
    e('s_lshl_b32 s40, s40, 18'); srd(E, SK, 46, 40, 0x40000); srd(E, SV, 48, 40, 0x40000)
    e(f's_mul_i32 s40, s{S_B}, {18*131072}', f's_lshl_b32 s41, s{S_H}, 12', 's_add_u32 s40, s40, s41'); srd(E, SO, 58, 40, 18*131072)
    srd(E, SWO, 52, None, 0x400000)
    e('v_bfe_u32 v4, v0, 3, 1', 'v_bfe_u32 v5, v0, 2, 1', 'v_bfe_u32 v7, v0, 2, 2')
    e(f's_lshr_b32 s42, s{S_W}, 1')
    e('v_lshlrev_b32 v8, 4, v2', 'v_lshl_add_u32 v9, v3, 12, v8', f's_lshl_b32 s41, s{S_W}, 10', f'v_add_u32 v{VDK}, s41, v9')
    e('v_lshl_add_u32 v9, v3, 11, v8', 's_lshl_b32 s41, s42, 13', f's_lshl_b32 s43, s{S_P}, 10', 's_add_u32 s41, s41, s43', f'v_add_u32 v{VDV}, s41, v9')
    e(f's_mul_i32 s{S_FK}, s{S_W}, 4160', f's_mul_i32 s{S_FV}, s{S_W}, 4224', f's_add_u32 s{S_FV}, s{S_FV}, {KSZ}')
    c = f2u(math.log2(math.e) / math.sqrt(128.0))
    e(f's_mov_b32 s{S_SC}, {c:#x}', f's_mov_b32 s{S_SC+1}, {c:#x}', f's_mov_b32 s{S_SLOT}, {SLOT}', f's_mov_b32 s{S_SAFE}, 0')
    e('v_lshlrev_b32 v8, 1, v4', 'v_xor_b32 v8, v8, v3', 'v_lshlrev_b32 v8, 4, v8', 'v_lshl_add_u32 v8, v2, 6, v8')
    e(f's_add_u32 s40, s{S_XM}, {QB0}', f'v_add_u32 v{VXR}, s40, v8')
    e('v_and_b32 v8, 1, v3', 'v_lshl_add_u32 v8, v8, 2, v7', 'v_mul_u32_u24 v8, 1056, v8')
    e('v_lshrrev_b32 v9, 1, v3', 'v_lshl_add_u32 v8, v9, 9, v8', 'v_lshl_add_u32 v8, v6, 3, v8')
    e(f's_lshl_b32 s40, s{S_P}, 7', f's_add_u32 s41, s40, {QB0+QW}', f'v_add_u32 v{VWR(0)}, s41, v8')
    e(f's_sub_u32 s41, {QB0+QW+128}, s40', f'v_add_u32 v{VWR(1)}, s41, v8')
    e('v_xor_b32 v8, v4, v5', 'v_lshl_add_u32 v8, v6, 1, v8', 'v_lshl_add_u32 v8, v4, 3, v8', 'v_mul_u32_u24 v8, 1040, v8')
    e('v_and_b32 v10, 1, v3', 'v_lshl_add_u32 v10, v10, 1, v9', 'v_lshl_add_u32 v8, v10, 4, v8')
    e(f's_mul_i32 s40, s{S_P}, 640', f'v_add_u32 v{VK(0,0)}, s40, v8', 's_sub_u32 s40, 640, s40', f'v_add_u32 v{VK(1,1)}, s40, v8')
    e(f's_mul_i32 s40, s{S_P}, 384', 's_add_u32 s41, s40, 128', f'v_add_u32 v{VK(0,1)}, s41, v8', 's_sub_u32 s40, 512, s40', f'v_add_u32 v{VK(1,0)}, s40, v8')
    e('v_and_b32 v10, 1, v3', 'v_xor_b32 v10, v10, v9', 'v_lshl_add_u32 v10, v7, 1, v10', 'v_mul_u32_u24 v10, 1056, v10')
    e('v_lshl_add_u32 v10, v9, 8, v10', 'v_lshl_add_u32 v10, v6, 3, v10')
    e(f's_mul_i32 s40, s{S_P}, 8448', f's_add_u32 s41, s40, {KSZ}', f'v_add_u32 v{VV(0)}, s41, v10', f's_sub_u32 s41, {KSZ+8448}, s40', f'v_add_u32 v{VV(1)}, s41, v10')
    e('v_mov_b32 v8, 0x3f803f80')
    for r in range(4): e(f'v_accvgpr_write_b32 a{ONES+r}, v8')
    e(f's_and_b32 s{S_KH}, s2, 1', 's_lshr_b32 s41, s2, 3', f's_lshr_b32 s{S_NS}, s41, 2', f's_and_b32 s{S_R4}, s41, 3')
    e('s_and_b32 s40, s2, 6', 's_and_b32 s42, s41, 1', f's_add_u32 s{S_B2}, s40, s42')
    e('s_bfe_u32 s42, s41, 0x10001', 's_mul_i32 s42, s42, 9', f's_mul_i32 s43, s{S_KH}, 5', f's_add_u32 s{S_T2}, s42, s43', 's_add_u32 s42, s42, 5', f's_sub_u32 s{S_T1}, s42, s43')
    e(f's_mul_i32 s{S_WOM}, s{S_W}, {WB}', f'v_lshlrev_b32 v{VL16}, 4, v0')
    e('v_lshlrev_b32 v8, 2, v4', 'v_lshl_add_u32 v8, v3, 3, v8', 'v_lshlrev_b32 v8, 10, v8', 'v_and_b32 v9, 7, v0', f's_lshl_b32 s40, s{S_KH}, 2', 'v_xor_b32 v9, s40, v9', 'v_lshl_add_u32 v8, v9, 4, v8')
    e(f's_lshl_b32 s40, s{S_KH}, 21', f's_lshl_b32 s41, s{S_W}, 19', 's_add_u32 s40, s40, s41', f's_lshl_b32 s41, s{S_NS}, 7', 's_add_u32 s40, s40, s41', f'v_add_u32 v{VWD}, s40, v8')
    e('v_mul_u32_u24 v8, 1056, v7', 'v_lshl_add_u32 v8, v3, 7, v8', 'v_lshl_add_u32 v8, v6, 3, v8', f'v_add_u32 v{VWO(0)}, s{S_WOM}, v8')
    e(f'v_add_u32 v{VWO(1)}, {2*SLOT}, v{VWO(0)}', f'v_add_u32 v{VWO(2)}, {WSP}, v{VWO(0)}')
    for a in range(4):
        e(f's_add_u32 s40, s{S_R4}, {a}', 's_and_b32 s40, s40, 3', 's_lshl_b32 s40, s40, 12', f's_lshl_b32 s41, s{S_KH}, 16', 's_add_u32 s40, s40, s41', f's_lshl_b32 s41, s{S_W}, 14', 's_add_u32 s40, s40, s41', f'v_add_u32 v{VOF(a)}, s40, v{VL16}')
    E.ext(flat(q_dma(1)))

    def q_reads(s):
        b = s & 1
        o = [f'    ds_read_b128 {ar(XF(b, j),4)}, v{VXR} offset:{j*1024}' for j in (4, 0)]
        o += [f'    ds_read_b64_tr_b16 {ar(WF(b, f)+2*h2,2)}, v{VWR(f>>2)} offset:{(f&3)*32+h2*256}' for f in range(8) for h2 in range(2)]
        o += [f'    ds_read_b128 {ar(XF(b, j),4)}, v{VXR} offset:{j*1024}' for j in (1, 2, 3)]
        d = QSTG if (s & 3) != 3 else (-3 * QSTG) & 0xffffffff
        u = [f'    v_add_u32 v{r}, {d:#x}, v{r}' for r in (VXR, VWR(0), VWR(1))] if s < 15 else []
        return o, u
    E.wait({'S0', 'clr'}); e('s_barrier')
    E.stamp(1); E.stamp(1, 'q')
    srd(E, 0 + 8 if False else 80, 56, None, 256)
    e(f's_lshl_b32 s40, s{S_W}, 6', 'v_add_u32 v8, s40, v0', 'v_lshlrev_b32 v8, 8, v8', 'v_mov_b32 v9, 1')
    rd, up = q_reads(0)
    E.ext(rd); e('buffer_atomic_add v9, v8, s[80:83], 0 offen sc1 #@init')
    E.ext(flat(q_dma(2))); E.ext(up)
    E.wait({'S1'}, 0); e('s_barrier')
    for s in range(1, 17):
        b = (s - 1) & 1
        order = [(4, f) for f in range(4)] + [(j, f) for j in range(4) for f in range(8)]
        mf = [mfma(vr(ACC(j, f), 4), ar(WF(b, f), 4), ar(XF(b, j), 4), '0' if s == 1 else vr(ACC(j, f), 4)) for j, f in order]
        rd, up = q_reads(s) if s <= 15 else ([], [])
        dm = q_dma(s + 2) if s + 2 <= 15 else []
        if s == OPT.kv0_it: dm = dm + kv_all(0)
        if s == max(14, OPT.kv0_it + 1): dm = dm + kv_all(1)
        n = len(dm)
        dg = [2 + (k * 33) // n for k in range(n)] if n else []
        streams = []
        for grp, g in zip(dm, dg):
            streams.append((grp[:-1], [g - 1] * (len(grp) - 1) if len(grp) <= 3 else [g - 2, g - 2] + [g - 1] * (len(grp) - 3)))
            streams.append((grp[-1:], [g]))
        busy = set(dg) | {g - 1 for g in dg}
        rg = []
        for g in range(36):
            rg += [g] * (1 if g in busy else 2)
        streams.append((rd, rg)); streams.append((up, [33, 34, 35]))
        E.ext(weave(mf, streams))
        if OPT.stamp == 'q' and s in (1, 3, 6, 9, 12, 15): E.stamp((1, 3, 6, 9, 12, 15).index(s) + 2, 'q', drain=False)
        if s <= 14: E.wait({f'S{s+1}'}, 0); e('s_barrier')
        elif s == 15: E.wait(None, 0)
    E.stamp(2)
    def q_pack(j, s):
        a = ACC(j, 2 * s)
        o = [f'    v_pk_mul_f32 v[{a+2*k}:{a+2*k+1}], v[{a+2*k}:{a+2*k+1}], s[{S_SC}:{S_SC+1}]' for k in range(4)]
        o += [f'    v_cvt_pk_bf16_f32 v{a+k}, v{a+2*k}, v{a+2*k+1}' for k in range(4)]
        o2 = [f'    v_permlane16_swap_b32 v{a}, v{a+2}', f'    v_permlane16_swap_b32 v{a+1}, v{a+3}']
        o3 = [f'    v_accvgpr_write_b32 a{QQ(j, s)+k}, v{a+k}' for k in range(4)]
        return o, o2, o3
    fr = [(4, 0), (4, 1)] + [(j, s) for j in range(4) for s in range(4)]
    e(f's_lshl_b32 s40, s{S_W}, 11', f's_add_u32 s41, s40, {EXCH}', f'v_add_u32 v9, s41, v{VL16}')
    e('s_xor_b32 s40, s40, 2048', f's_add_u32 s41, s40, {EXCH}', f'v_add_u32 v10, s41, v{VL16}')
    prev = None
    for k, (j, s) in enumerate(fr):
        o, o2, o3 = q_pack(j, s)
        E.ext(o)
        if prev:
            E.ext(prev[0])
            if prev[2][0] == 4: e(f'ds_write_b128 v9, {vr(ACC(4, 2*prev[2][1]),4)} offset:{prev[2][1]*1024}')
            E.ext(prev[1])
        prev = (o2, o3, (j, s))
        if k == 12:
            E.wait({'KV0'}, 0); e('s_barrier')
            E.ext(k_reads(0, 0)); e(f'ds_read_b128 {ar(QQ(4,2),4)}, v10', f'ds_read_b128 {ar(QQ(4,3),4)}, v10 offset:1024'); E.ext(v_reads(0, 0))
    E.ext(prev[0] + prev[1])
    E.wait(None, 0)
    E.stamp(3)

    e(f's_mov_b32 s{S_KOFF}, {2*16384}', f's_add_u32 s{S_FK}, s{S_FK}, {2*SLOT}', f's_add_u32 s{S_FV}, s{S_FV}, {2*SLOT}', f's_mov_b32 s{S_T}, 0')
    addr = [VK(0,0), VK(0,1), VV(0), VK(1,0), VK(1,1), VV(1)]
    def iteration(t, n0):
        o = []; n = n0
        units = ([(2*t-1, j) for j in range(4)] if t >= 1 else []) + ([(2*t, j) for j in range(5)] if t <= 15 else [])
        def prev_unit(u, k):
            i, j = u
            for _ in range(k):
                if j > 0: j -= 1
                else:
                    i -= 1
                    if i < 0: return None
                    j = 4 if i % 2 == 0 else 3
            return (i, j)
        if t <= 13: dmas = [kv_dma('K', k, f'KV{t+2}') for k in range(4)] + [kv_dma('V', k, f'KV{t+2}') for k in range(4)]
        else: dmas = wo_dma(2 * (t - 14)) + wo_dma(2 * (t - 14) + 1)
        per = 2 if t in (0, 16) else 1
        for (i, j) in units:
            A = (i & 1) == 1
            rd = []; tail = []
            if t <= 15:
                u = 0 if A else 1
                kr = k_reads(u, u); vrd = v_reads(u, u)
                rd = kr[4*j:4*j+4] if j < 2 else (vrd[8*(j-2):8*(j-2)+8] if j < 4 else [])
            ex = []
            rd = list(rd)
            for _ in range(per if j < 4 else 0):
                dm = dmas.pop(0)
                ex += dm[:-1] + rd[:1] + dm[-1:]; rd = rd[1:]
            ex += rd
            if t <= 15:
                if A and j == 3: tail = ['    s_waitcnt lgkmcnt(14)']
                if (not A) and j == 1: tail = ['    s_waitcnt lgkmcnt(8)']
                if (not A) and j == 4:
                    ex += [f'    s_add_u32 s{S_T}, s{S_T}, 1', f'    s_and_b32 s{S_TMP}, s{S_T}, 3', f'    s_cmp_eq_u32 s{S_TMP}, 0', f'    s_cselect_b32 s{S_D}, {(-3*SLOT) & 0xffffffff:#x}, s{S_SLOT}']
                    ex += [f'    v_add_u32 v{r}, s{S_D}, v{r}' for r in addr]
                    if t <= 12:
                        ex += [f'    s_cmp_eq_u32 s{S_TMP}, 2', f'    s_cselect_b32 s{S_D}, {(-3*SLOT) & 0xffffffff:#x}, s{S_SLOT}',
                               f'    s_add_u32 s{S_FK}, s{S_FK}, s{S_D}', f'    s_add_u32 s{S_FV}, s{S_FV}, s{S_D}', f'    s_add_u32 s{S_KOFF}, s{S_KOFF}, 16384']
                    tail = ['    s_waitcnt vmcnt(8) lgkmcnt(0)' if t <= 14 else '    s_waitcnt lgkmcnt(0)', '    s_barrier']
            pu = prev_unit((i, j), 2); su = prev_unit((i, j), 1)
            pv = (pu[0], pu[1], pu[0] == 0) if pu else None
            o += slot(n, (i, j), su is not None, pv, ex, tail); n += 1
        if t == 16:
            o += slot(n, None, True, (31, 2, False), flat(wo_dma(6))); n += 1
            o += slot(n, None, False, (31, 3, False), []); n += 1
        return o, n
    o, n = iteration(0, 0); E.ext(o)
    o, n = iteration(1, n); E.ext(o)
    E.stamp(4)
    e('L_loop:')
    o1, n1 = iteration(2, n); o2, n2 = iteration(3, n1)
    body = o1 + o2[:-1] + [f'    s_cmp_lt_u32 s{S_T}, 14', o2[-1], '    s_cbranch_scc1 L_loop']
    print('loop hazards', check_loop([x.split('#@')[0] for x in body]), 'instrs', len(body), file=sys.stderr)
    E.ext(body)
    o, n = iteration(14, n); E.ext(o)
    o, n = iteration(15, n); E.ext(o)
    o, n = iteration(16, n); E.ext(o)
    E.stamp(5); E.stamp(1, 'o')

    e('L_fin:')
    e(f's_mul_i32 s40, s{S_W}, 8448', f's_add_u32 s40, s40, {MRG}', f'v_add_u32 v9, s40, v{VL16}')
    for j in range(5): e(f'v_accvgpr_read_b32 v{T0+2*j}, a{LL(j)}')
    for dt in range(8): e(f'ds_write_b128 v9, {vr(OO(4, dt),4)} offset:{dt*1024}')
    e('v_lshlrev_b32 v10, 2, v0', 'v_add_u32 v10, s40, v10', f'ds_write_b32 v10, v{T0+8} offset:8192')
    if OPT.safe:
        e(f'v_min3_f32 v11, v{T0}, v{T0+2}, v{T0+4}', f'v_max3_f32 v12, v{T0}, v{T0+2}, v{T0+4}')
        e(f'v_min3_f32 v11, v11, v{T0+6}, v{T0+8}', f'v_max3_f32 v12, v12, v{T0+6}, v{T0+8}')
        e(f'v_add_f32 v13, v{T0}, v{T0+2}', f'v_add_f32 v13, v13, v{T0+4}', f'v_add_f32 v13, v13, v{T0+6}', f'v_add_f32 v13, v13, v{T0+8}')
        e(f'v_cmp_lt_f32 vcc, {f2u(2.0**-64):#x}, v11', f's_mov_b64 s[42:43], vcc', f'v_cmp_gt_f32 vcc, {f2u(2.0**64):#x}, v12', 's_and_b64 s[42:43], s[42:43], vcc')
        e('v_cmp_eq_f32 vcc, v13, v13', 's_and_b64 s[42:43], s[42:43], vcc', 's_cmp_eq_u64 s[42:43], -1', 's_cselect_b32 s42, 0, 1')
        if OPT.force_safe: e('s_mov_b32 s42, 1')
        e(f's_lshl_b32 s43, s{S_W}, 2', f's_add_u32 s43, s43, {FLG}', 'v_mov_b32 v11, s43', 'v_mov_b32 v12, s42', 'ds_write_b32 v11, v12', f'v_mov_b32 v11, {FLG}')
    e(f's_lshl_b32 s41, s{S_P}, 12', 's_add_u32 s42, s40, s41', f'v_add_u32 v14, s42, v{VL16}')
    e(f's_xor_b32 s43, s{S_W}, 1', 's_mul_i32 s43, s43, 8448', f's_add_u32 s43, s43, {MRG}', 's_add_u32 s42, s43, s41', f'v_add_u32 v15, s42, v{VL16}')
    e('v_lshlrev_b32 v10, 2, v0', 'v_add_u32 v10, s43, v10')
    for j in range(4): e(f'v_rcp_f32 v{T0+2*j}, v{T0+2*j}')
    E.wait(None, 0); e('s_barrier')
    if OPT.safe:
        e('ds_read_b128 v[4:7], v11', 's_waitcnt lgkmcnt(0)', 'v_or3_b32 v4, v4, v5, v6', 'v_or_b32 v4, v4, v7', 'v_readfirstlane_b32 s42, v4',
          f's_andn2_b32 s42, s42, s{S_SAFE}', 's_cmp_lg_u32 s42, 0', 's_cbranch_scc1 L_safe')
    for k in range(4): e(f'ds_read_b128 {vr(OO(4, k),4)}, v14 offset:{k*1024}')
    for k in range(4): e(f'ds_read_b128 {vr(OO(4, 4+k),4)}, v15 offset:{k*1024}')
    e(f'ds_read_b32 v{T0+9}, v10 offset:8192')
    def norm_store(base, nk, rl, soff):
        o = []
        for kk in range(nk):
            a = base + 8 * kk
            o += [f'    v_pk_mul_f32 v[{a+2*k}:{a+2*k+1}], v[{a+2*k}:{a+2*k+1}], v[{rl}:{rl+1}] op_sel_hi:[1,0]' for k in range(4)]
            o += [f'    v_cvt_pk_bf16_f32 v{a+k}, v{a+2*k}, v{a+2*k+1}' for k in range(4)]
            o += [f'    buffer_store_dwordx4 {vr(a,4)}, v{VL16}, s[{SO}:{SO+3}], s{soff} offen offset:{kk*1024} sc1 #@O']
        return o
    for j in range(4):
        e(f's_lshl_b32 s40, s{S_W}, 19', f's_add_u32 s40, s40, {j*131072}')
        E.ext(norm_store(OO(j, 0), 4, T0+2*j, 40))
    E.wait(None, 0)
    e(f'v_add_f32 v{T0+8}, v{T0+8}, v{T0+9}', f'v_rcp_f32 v{T0+8}, v{T0+8}')
    for k in range(8):
        a = OO(4, 0) + 2 * k
        e(f'v_pk_add_f32 v[{a}:{a+1}], v[{a}:{a+1}], v[{a+16}:{a+17}]')
    e(f's_lshr_b32 s40, s{S_W}, 1', 's_add_u32 s40, s40, 16', 's_lshl_b32 s40, s40, 17', f's_lshl_b32 s41, s{S_P}, 11', 's_add_u32 s40, s40, s41')
    E.ext(norm_store(OO(4, 0), 2, T0+8, 40))
    E.stamp(2, 'o')
    e('s_waitcnt vmcnt(18)')
    for i in range(7): E.ext(wo_reads(i))
    e(f's_lshl_b32 s40, s{S_B2}, 5', f's_lshl_b32 s41, s{S_KH}, 4', 's_add_u32 s40, s40, s41', f's_lshl_b32 s41, s{S_W}, 2', 's_add_u32 s40, s40, s41', 's_lshl_b32 s40, s40, 7', f's_add_u32 s40, s40, {F1OFF}')
    e('v_and_b32 v6, 3, v0', 'v_lshlrev_b32 v4, 7, v6', 'v_add_u32 v4, s40, v4')
    e(f's_lshl_b32 s40, s{S_B}, 5', f's_add_u32 s40, s40, s{S_H}', 's_lshl_b32 s40, s40, 7', f's_add_u32 s40, s40, {F1OFF}')
    e(f's_lshl_b32 s41, s{S_W}, 6', 'v_add_u32 v5, s41, v0', 'v_cmp_eq_u32 vcc, 0, v5', 'v_mov_b32 v5, s40', 'v_mov_b32 v7, 0x7ffffff0', 'v_cndmask_b32 v5, v7, v5, vcc', 'v_mov_b32 v7, 1')
    e(f's_mul_i32 s40, s{S_B2}, {18*131072}'); srd(E, SO, 58, 40, 18*131072)
    TS = [24 + 0]
    ST1 = [28, 29, 30, 31, 32]; ST2 = [33, 34, 35, 36]
    for t in range(4): e(f's_add_u32 s40, s{S_T1}, {t}', f's_lshl_b32 s{ST1[t]}, s40, 17', f's_add_u32 s40, s{S_T2}, {t}', f's_lshl_b32 s{ST2[t]}, s40, 17')
    e(f's_min_u32 s40, s{S_T1}, s{S_T2}', 's_add_u32 s40, s40, 4', f's_lshl_b32 s{ST1[4]}, s40, 17')
    e('v_lshrrev_b32 v8, 2, v0', f's_lshl_b32 s40, s{S_R4}, 2', 'v_add_u32 v8, s40, v8', 'v_and_b32 v8, 15, v8', 'v_lshlrev_b32 v8, 10, v8')
    e(f's_lshl_b32 s40, s{S_KH}, 16', f's_lshl_b32 s41, s{S_W}, 14', 's_add_u32 s40, s40, s41', f's_lshl_b32 s41, s{S_NS}, 7', 's_add_u32 s40, s40, s41', 'v_add_u32 v8, s40, v8', 'v_lshl_add_u32 v9, v6, 17, v8')
    e('s_waitcnt vmcnt(0) lgkmcnt(0)', 's_barrier'); E.vq = []
    E.stamp(3, 'o')
    e(f'buffer_store_dword v7, v5, s[{SWS}:{SWS+3}], 0 offen sc1 #@f1')
    e('v_mov_b32 v10, 0', 'buffer_load_dword v11, v10, s[80:83], 0 offen sc1 #@ini')
    for i in range(7, 16): E.ext(flat(wo_dma(i)))
    for i in range(7, 16):
        E.wait({f'W{i}'}); E.ext(wo_reads(i))
    E.stamp(4, 'o')
    e('s_mov_b32 s41, 0x40000')
    e('L_p0:', 'v_cmp_eq_u32 vcc, 0x100, v11', 's_cbranch_vccnz L_p1', 'buffer_load_dword v11, v10, s[80:83], 0 offen sc1', 's_sleep 2', 's_sub_u32 s41, s41, 1', 's_cmp_lg_u32 s41, 0', 's_waitcnt vmcnt(0)', 's_cbranch_scc1 L_p0')
    e('L_p1:', f'buffer_load_dword v11, v4, s[{SWS}:{SWS+3}], 0 offen sc1', 's_sub_u32 s41, s41, 1', 's_waitcnt vmcnt(0)', 'v_cmp_ne_u32 vcc, 1, v11', 's_cbranch_vccz L_p2',
      's_sleep 1', 's_cmp_gt_i32 s41, 0', 's_cbranch_scc1 L_p1', 'L_p2:')
    E.vq = []
    E.stamp(6); E.stamp(5, 'o')
    A1 = lambda t, nt: 16 + (t * 4 + nt) * 4
    A2 = lambda t, nt: 96 + (t * 4 + nt) * 4
    RING0 = 160
    def o_load(reg, soff, ks, tag): return f'    buffer_load_dwordx4 {vr(reg,4)}, v{VOF(ks >> 2)}, s[{SO}:{SO+3}], s{soff} offen offset:{(ks & 3)*1024} sc1 #@{tag}'
    R1 = lambda ks, t: RING0 + ((ks & 3) * 5 + t) * 4
    ld1 = lambda ks: [o_load(R1(ks, t), ST1[t], ks, f'A{ks}') for t in range(5)]
    P2 = [RING0 + 16 * k for k in range(5)] + [36, 56, 76]
    R2 = lambda ks, t: P2[ks & 7] + 4 * t
    ld2 = lambda ks: [o_load(R2(ks, t), ST2[t], ks, f'B{ks}') for t in range(4)]
    E.ext(ld1(0))
    for w2 in range(OPT.warm):
        e(f'buffer_load_dword v12, v9, s[{SO}:{SO+3}], s{ST1[0]} offen offset:{64*w2} sc1 #@wm', f'buffer_load_dword v13, v8, s[{SO}:{SO+3}], s{ST1[4]} offen offset:{64*w2} sc1 #@wm',
          f'buffer_load_dword v14, v9, s[{SO}:{SO+3}], s{ST2[0]} offen offset:{64*w2} sc1 #@wm')
    E.ext(ld1(1) + ld1(2))
    E.wait(None, 0)
    for ks in range(16):
        mf = [mfma(vr(A1(t, nt), 4), ar(16*ks + 4*nt, 4), vr(R1(ks, t), 4), '0' if ks == 0 else vr(A1(t, nt), 4)) for t in range(5) for nt in range(4)]
        E.wait({f'A{ks}'})
        if ks + 3 <= 15: ld = ld1(ks + 3); lg = [0, 4, 8, 12, 16]
        else:
            k2 = {13: [0], 14: [1], 15: [2]}[ks]; ld = [x for k in k2 for x in ld2(k)]; lg = [0, 4, 8, 12]
        E.ext(weave(mf, [(ld, lg)]))
    RW = 20480
    e(f's_mul_i32 s40, s{S_W}, {RW}', f'v_add_u32 v10, s40, v{VL16}')
    E.ext(ld2(3) + ld2(4))
    for t in range(5):
        for nt in range(4): e(f'ds_write_b128 v10, {vr(A1(t, nt),4)} offset:{(nt*5+t)*1024}')
    e(f's_mul_i32 s40, s{S_W}, 5120', f'v_add_u32 v10, s40, v{VL16}', f'v_add_u32 v11, {2*RW}, v10')
    e('s_lshl_b32 s41, s2, 2', f's_add_u32 s41, s41, s{S_W}', 's_mul_i32 s42, s41, 5120', f's_add_u32 s42, s42, {XOFF}', 's_add_u32 s43, s42, 4096')
    e('s_lshl_b32 s41, s41, 7', f's_add_u32 s41, s41, {F2OFF}', 'v_cmp_eq_u32 vcc, 0, v0', 'v_mov_b32 v5, s41', 'v_mov_b32 v7, 0x7ffffff0', 'v_cndmask_b32 v5, v7, v5, vcc', 'v_mov_b32 v7, 1')
    E.wait(None, 0); e('s_barrier')
    for w2 in range(4):
        for t in range(5): e(f'ds_read_b128 {vr(16+(w2*5+t)*4,4)}, v{10 if w2 < 2 else 11} offset:{(w2 & 1)*RW + t*1024}')
    E.wait(None, 10)
    for k in range(10): e(f'v_pk_add_f32 v[{16+2*k}:{17+2*k}], v[{16+2*k}:{17+2*k}], v[{36+2*k}:{37+2*k}]')
    E.wait(None, 0)
    E.ext(ld2(5))
    for k in range(10): e(f'v_pk_add_f32 v[{56+2*k}:{57+2*k}], v[{56+2*k}:{57+2*k}], v[{76+2*k}:{77+2*k}]')
    E.ext(ld2(7))
    for k in range(10): e(f'v_pk_add_f32 v[{16+2*k}:{17+2*k}], v[{16+2*k}:{17+2*k}], v[{56+2*k}:{57+2*k}]')
    E.ext(ld2(6))
    for t in range(5): e(f'buffer_store_dwordx4 {vr(16+4*t,4)}, v{VL16}, s[{SWS}:{SWS+3}], s{42 if t < 4 else 43} offen offset:{(t & 3)*1024} sc1 #@X')
    E.stamp(6, 'o')
    for ks in range(16):
        mf = [mfma(vr(A2(t, nt), 4), ar(16*ks + 4*nt, 4), vr(R2(ks, t), 4), '0' if ks == 0 else vr(A2(t, nt), 4)) for t in range(4) for nt in range(4)]
        E.wait({f'B{ks}'} | ({'B7'} if ks == 6 else set()))
        ld = ld2(ks + 7) if 1 <= ks <= 8 else []
        if ks == 8: e(f'buffer_store_dword v7, v5, s[{SWS}:{SWS+3}], 0 offen sc1 #@f2')
        E.ext(weave(mf, [(ld, [0, 4, 8, 12])]))
    E.stamp(7, 'o')
    e('s_xor_b32 s41, s2, 1', 's_lshl_b32 s41, s41, 2', f's_xor_b32 s42, s{S_W}, 2', 's_add_u32 s41, s41, s42', 's_mul_i32 s42, s41, 5120', f's_add_u32 s42, s42, {XOFF}', 's_add_u32 s43, s42, 4096')
    e('s_lshl_b32 s41, s41, 7', f's_add_u32 s41, s41, {F2OFF}', 'v_mov_b32 v4, s41', f'buffer_load_dword v11, v4, s[{SWS}:{SWS+3}], 0 offen sc1')
    R2B = 4 * RW
    e(f's_lshl_b32 s40, s{S_W}, 14', f's_add_u32 s40, s40, {R2B}', f'v_add_u32 v10, s40, v{VL16}')
    for t in range(4):
        for nt in range(4): e(f'ds_write_b128 v10, {vr(A2(t, nt),4)} offset:{(nt*4+t)*1024}')
    e(f's_lshl_b32 s40, s{S_W}, 12', f's_add_u32 s40, s40, {R2B}', f'v_add_u32 v10, s40, v{VL16}')
    e('s_mov_b32 s41, 0x40000')
    e('L_x0:', 's_waitcnt vmcnt(0)', 'v_cmp_ne_u32 vcc, 1, v11', 's_cbranch_vccz L_x1', f'buffer_load_dword v11, v4, s[{SWS}:{SWS+3}], 0 offen sc1', 's_sleep 1', 's_sub_u32 s41, s41, 1', 's_cmp_lg_u32 s41, 0', 's_cbranch_scc1 L_x0', 'L_x1:')
    for t in range(5): e(f'buffer_load_dwordx4 {vr(160+4*t,4)}, v{VL16}, s[{SWS}:{SWS+3}], s{42 if t < 4 else 43} offen offset:{(t & 3)*1024} sc1')
    E.wait(None, 0); e('s_barrier')
    for w2 in range(4):
        for t in range(4): e(f'ds_read_b128 {vr(96+(w2*4+t)*4,4)}, v10 offset:{w2*16384 + t*1024}')
    e(f's_mul_i32 s40, s{S_B2}, 294912'); srd(E, SX, 54, 40, 294912)
    e('v_lshlrev_b32 v12, 10, v2', 'v_lshl_add_u32 v12, v3, 3, v12')
    e(f's_lshl_b32 s40, s{S_KH}, 1', f's_xor_b32 s40, s40, s{S_W}', 's_lshl_b32 s40, s40, 5', f's_lshl_b32 s41, s{S_NS}, 7', 's_add_u32 s40, s40, s41', 'v_add_u32 v12, s40, v12')
    e(f's_lshr_b32 s42, s{ST1[4]}, 3', f's_cmp_ge_u32 s{S_W}, 2', 's_cselect_b32 s42, 0x100000, s42')
    E.wait(None, 8)
    for k in range(8): e(f'v_pk_add_f32 v[{96+2*k}:{97+2*k}], v[{96+2*k}:{97+2*k}], v[{112+2*k}:{113+2*k}]')
    E.wait(None, 0)
    for k in range(8): e(f'v_pk_add_f32 v[{128+2*k}:{129+2*k}], v[{128+2*k}:{129+2*k}], v[{144+2*k}:{145+2*k}]')
    for k in range(8): e(f'v_pk_add_f32 v[{96+2*k}:{97+2*k}], v[{96+2*k}:{97+2*k}], v[{128+2*k}:{129+2*k}]')
    e('s_waitcnt vmcnt(0)')
    for t in range(5):
        a = 96 + 4 * t if t < 4 else 32
        e(f'v_pk_add_f32 v[{a}:{a+1}], v[{a}:{a+1}], v[{160+4*t}:{161+4*t}]', f'v_pk_add_f32 v[{a+2}:{a+3}], v[{a+2}:{a+3}], v[{162+4*t}:{163+4*t}]')
        e(f'v_cvt_pk_bf16_f32 v{a}, v{a}, v{a+1}', f'v_cvt_pk_bf16_f32 v{a+1}, v{a+2}, v{a+3}')
        if t < 4: e(f's_lshr_b32 s41, s{ST2[t]}, 3')
        e(f'buffer_store_dwordx2 v[{a}:{a+1}], v12, s[{SX}:{SX+3}], s{41 if t < 4 else 42} offen')
    if OPT.stamp:
        n = 10
        e('s_waitcnt vmcnt(0)'); E.stamp(7); E.stamp(8, 'o'); E.stamp(8, 'q')
        e(f's_add_u32 s4, s58, {STOFF}', 's_addc_u32 s5, s59, 0', 's_mov_b32 s6, 0x100000', 's_mov_b32 s7, 0x20000')
        e('s_lshl_b32 s40, s2, 10', f's_lshl_b32 s41, s{S_W}, 8', 's_add_u32 s40, s40, s41', 'v_mov_b32 v1, s40')
        for k in range(n): e(f'v_mov_b32 v2, s{60+2*k}', f'buffer_store_dword v2, v1, s[4:7], 0 offen offset:{4*k}', 's_waitcnt vmcnt(0)')
    e('L_end:', 's_endpgm')
    if OPT.safe: gen_safe(E, addr)
    return E.L

def gen_safe(E, addr):
    e = E.e
    e('L_safe:', f's_mov_b32 s{S_SAFE}, 1')
    for r in addr: e(f'v_add_u32 v{r}, {3*SLOT}, v{r}')
    e(f's_mul_i32 s{S_FK}, s{S_W}, 4160', f's_add_u32 s{S_FK}, s{S_FK}, {3*SLOT}', f's_mul_i32 s{S_FV}, s{S_W}, 4224', f's_add_u32 s{S_FV}, s{S_FV}, {3*SLOT+KSZ}', f's_mov_b32 s{S_KOFF}, 0')
    for r in range(16, 176): e(f'v_mov_b32 v{r}, 0')
    for j in range(5):
        e(f'v_mov_b32 v{MM(j)}, 0xff800000')
        for r in range(4): e(f'v_accvgpr_write_b32 a{LL(j)+r}, 0')
    e('L_sloop:', 's_barrier')
    for k in range(4): E.ext(kv_dma('K', k, 's'))
    for k in range(4): E.ext(kv_dma('V', k, 's'))
    e('s_waitcnt vmcnt(0)', 's_barrier')
    for u in range(2):
        E.ext(k_reads(u, 0) + v_reads(u, 0)); e('s_waitcnt lgkmcnt(0)')
        for j in range(5 if u == 0 else 4):
            for kt in range(2):
                for s in range(4):
                    d = vr(SS(0, kt), 4); e(mfma(d, ar(KF(0, kt*4+s), 4), ar(QQ(j, s), 4), '0' if s == 0 else d))
            r = SS(0, 0)
            e(f'v_max3_f32 v4, v{r}, v{r+1}, v{r+2}', f'v_max3_f32 v4, v4, v{r+3}, v{r+4}', f'v_max3_f32 v4, v4, v{r+5}, v{r+6}', f'v_max3_f32 v4, v4, v{r+7}, v{MM(j)}')
            e('v_mov_b32 v5, v4', 'v_permlane16_swap_b32 v4, v5', 'v_max_f32 v4, v4, v5', 'v_mov_b32 v5, v4', 'v_permlane32_swap_b32 v4, v5', 'v_max_f32 v4, v4, v5')
            e(f'v_sub_f32 v5, v{MM(j)}, v4', f'v_mov_b32 v{MM(j)}, v4', 'v_exp_f32 v5, v5')
            for k in range(8): e(f'v_sub_f32 v{r+k}, v{r+k}, v4')
            for k in range(8): e(f'v_exp_f32 v{r+k}, v{r+k}')
            for k in range(32): e(f'v_mul_f32 v{OO(j,0)+k}, v{OO(j,0)+k}, v5')
            e(f'v_accvgpr_read_b32 v6, a{LL(j)}', 'v_mul_f32 v6, v6, v5')
            for k in range(4): e(f'v_accvgpr_write_b32 a{LL(j)+k}, v6')
            for h in range(4): e(f'v_cvt_pk_bf16_f32 v{PP(0)+h}, v{r+2*h}, v{r+2*h+1}')
            for dt in range(8): e(mfma(vr(OO(j, dt), 4), ar(VF(0, dt), 4), vr(PP(0), 4), vr(OO(j, dt), 4)))
            e(mfma(ar(LL(j), 4), ar(ONES, 4), vr(PP(0), 4), ar(LL(j), 4)))
    e(f's_add_u32 s{S_KOFF}, s{S_KOFF}, 16384', f's_cmp_lt_u32 s{S_KOFF}, {16*16384}', 's_cbranch_scc1 L_sloop')
    e(f's_lshl_b32 s40, s{S_W}, 8', f's_add_u32 s41, s40, {EXCH + 8192}', 'v_lshlrev_b32 v4, 2, v0', 'v_add_u32 v5, s41, v4', 's_xor_b32 s40, s40, 256', f's_add_u32 s41, s40, {EXCH + 8192}', 'v_add_u32 v4, s41, v4')
    e(f'ds_write_b32 v5, v{MM(4)}', 's_waitcnt lgkmcnt(0)', 's_barrier', 'ds_read_b32 v5, v4', 's_waitcnt lgkmcnt(0)')
    e(f'v_max_f32 v5, v5, v{MM(4)}', f'v_sub_f32 v5, v{MM(4)}, v5', 'v_exp_f32 v5, v5', 's_nop 7')
    for k in range(32): e(f'v_mul_f32 v{OO(4,0)+k}, v{OO(4,0)+k}, v5')
    e(f'v_accvgpr_read_b32 v6, a{LL(4)}', 'v_mul_f32 v6, v6, v5', f'v_accvgpr_write_b32 a{LL(4)}, v6', 's_nop 1', 's_branch L_fin')

DESC = '''.section .rodata,"a"
.p2align 6
.amdhsa_kernel {name}
  .amdhsa_next_free_vgpr 512
  .amdhsa_next_free_sgpr 102
  .amdhsa_accum_offset 256
  .amdhsa_group_segment_fixed_size 0
  .amdhsa_kernarg_size 64
  .amdhsa_user_sgpr_count 2
  .amdhsa_user_sgpr_kernarg_segment_ptr 1
  .amdhsa_system_sgpr_workgroup_id_x 1
.end_amdhsa_kernel
'''

def main(path):
    A, na = fix_hazards(gen())
    p, _, _ = check_waits(A)
    print('instrs', len(A), 'wait problems', len(p), 'pads', na, file=sys.stderr)
    for x in p[:10]: print('  ', x, file=sys.stderr)
    nm = f'{NAME}_kernel'
    s = [f'; @launch grid=(256,1,1) block=(256,1,1) lds={LDS_SZ}', '.amdgcn_target "amdgcn-amd-amdhsa--gfx950"', '.text',
         f'.globl {nm}', '.p2align 8', f'.type {nm},@function'] + A + [DESC.format(name=nm)]
    open(path, 'w').write('\n'.join(s) + '\n')

if __name__ == '__main__':
    args = sys.argv[2:]
    for a in args:
        k, v = a.split('=')
        cur = getattr(OPT, k)
        if isinstance(cur, bool): v = v == '1'
        elif isinstance(cur, int): v = int(v)
        elif k in ('ntq', 'ntw'): v = v + ' ' if v else ''
        setattr(OPT, k, v)
    main(sys.argv[1])
```
